```python
import torch

def _softmax(x, axis=-1):
    return torch.softmax(x, dim=axis)
def _gelu(x):
    return torch.nn.functional.gelu(x, approximate="tanh")
def _silu(x):
    return torch.nn.functional.silu(x)
def _sigmoid(x):
    return torch.sigmoid(x)
def _layernorm(x, axis=-1, eps=1e-5):
    m = x.mean(dim=axis, keepdim=True)
    v = x.var(dim=axis, keepdim=True, unbiased=False)
    return (x - m) / torch.sqrt(v + eps)
def _scatter_add(tgt, idx, src, axis=0):
    return tgt.clone().index_add_(axis, idx, src)
def _segment_sum(src, seg, n):
    out = torch.zeros((n,) + src.shape[1:], dtype=src.dtype)
    return out.index_add_(0, seg, src)
def _pad(x, pw):
    flat = tuple(v for pair in reversed(pw) for v in pair)
    return torch.nn.functional.pad(x, flat)

kernel_name = 'interleave_layers__gqa_block_cached__glu_gated_bilinear__decode'

def setup_inputs():

    _w = (lambda a: (lambda t: t.to(torch.bfloat16) if t.is_floating_point() else t)(torch.as_tensor(a)))
    def _A_setup():
        B, Sq, D = 4, 1, 512
        Hq, Hkv, Sk, Dh = 32, 8, 8192, 128
        assert Hq % Hkv == 0, (Hq, Hkv)
        return {
            "x": _w((lambda *s: torch.randn(*s, dtype=torch.bfloat16) * 0.05)(B, Sq, D)),
            "k_cache": _w((lambda *s: torch.randn(*s, dtype=torch.bfloat16) * 1.6)(B, Hkv, Sk, Dh)),
            "v_cache": _w((lambda *s: torch.randn(*s, dtype=torch.bfloat16) * 0.8)(B, Hkv, Sk, Dh)),
            "wq": _w((lambda *s: torch.randn(*s, dtype=torch.bfloat16) * 1.6)(D, Hq * Dh) * (D ** -0.5)),
            "wo": _w((lambda *s: torch.randn(*s, dtype=torch.bfloat16) * 0.8)(Hq * Dh, D) * ((Hq * Dh) ** -0.5)),
        }
    _A_in = _A_setup()

    def _B_setup():
        B, S, D, F = 4, 1, 512, 1792
        return {
            "x": _w((lambda *s: torch.randn(*s, dtype=torch.bfloat16) * 0.05)(B, S, D)),
            "w_gate": _w((lambda *s: torch.randn(*s, dtype=torch.bfloat16) * 0.4)(D, F) * (D ** -0.5)),
            "w_up": _w((lambda *s: torch.randn(*s, dtype=torch.bfloat16) * 0.4)(D, F) * (D ** -0.5)),
            "w_down": _w((lambda *s: torch.randn(*s, dtype=torch.bfloat16) * 0.4)(F, D) * (F ** -0.5)),
        }
    _B_in = _B_setup()

    return {
        "A_x": _A_in["x"],
        "A_k_cache": _A_in["k_cache"],
        "A_v_cache": _A_in["v_cache"],
        "A_wq": _A_in["wq"],
        "A_wo": _A_in["wo"],
        "B_x": _B_in["x"],
        "B_w_gate": _B_in["w_gate"],
        "B_w_up": _B_in["w_up"],
        "B_w_down": _B_in["w_down"],
    }

def reference(A_x, A_k_cache, A_v_cache, A_wq, A_wo, B_x, B_w_gate, B_w_up, B_w_down):
    def _A_ref(x, k_cache, v_cache, wq, wo):
        B, Sq, D = x.shape
        Hq, Dh = 32, 128
        Hkv = k_cache.shape[1]
        rep = Hq // Hkv
        q = (lambda x, *d: x.permute(*d))((x @ wq).reshape(B, Sq, Hq, Dh), 0, 2, 1, 3)
        k = (lambda x, n, axis: torch.repeat_interleave(x, n, dim=axis))(k_cache, rep, axis=1)
        v = (lambda x, n, axis: torch.repeat_interleave(x, n, dim=axis))(v_cache, rep, axis=1)
        scores = torch.einsum("bhqd,bhkd->bhqk", q, k) * (Dh ** -0.5)
        p = _softmax(scores, axis=-1)
        o = torch.einsum("bhqk,bhkd->bhqd", p, v)
        return (lambda x, *d: x.permute(*d))(o, 0, 2, 1, 3).reshape(B, Sq, Hq * Dh) @ wo

    def _B_ref(x, w_gate, w_up, w_down):
        g = torch.einsum("bsd,df->bsf", x, w_gate)
        u = torch.einsum("bsd,df->bsf", x, w_up)
        h = g * u
        return torch.einsum("bsf,fd->bsd", h, w_down)

    x = A_x
    x = x + _A_ref(_layernorm(x, axis=-1), A_k_cache, A_v_cache, A_wq, A_wo)
    x = x + _B_ref(_layernorm(x, axis=-1), B_w_gate, B_w_up, B_w_down)
    x = x + _A_ref(_layernorm(x, axis=-1), A_k_cache, A_v_cache, A_wq, A_wo)
    x = x + _B_ref(_layernorm(x, axis=-1), B_w_gate, B_w_up, B_w_down)
    return x
```

```python
KNAME = "interleave_layers__gqa_block_cached__glu_gated_bilinear__decode_kernel"

def wrap(body, grid=256, block=256, lds=0, nvgpr=512, accum=256, nsgpr=102, header=""):
    return f"""{header}; @launch grid=({grid},1,1) block=({block},1,1) lds={lds}
.amdgcn_target "amdgcn-amd-amdhsa--gfx950"
.text
.globl {KNAME}
.p2align 8
.type {KNAME},@function
{KNAME}:
{body}
.section .rodata,"a"
.p2align 6
.amdhsa_kernel {KNAME}
  .amdhsa_next_free_vgpr {nvgpr}
  .amdhsa_next_free_sgpr {nsgpr}
  .amdhsa_accum_offset {accum}
  .amdhsa_group_segment_fixed_size 0
  .amdhsa_kernarg_size 96
  .amdhsa_user_sgpr_count 2
  .amdhsa_user_sgpr_kernarg_segment_ptr 1
  .amdhsa_system_sgpr_workgroup_id_x 1
  .amdhsa_float_denorm_mode_32 3
.end_amdhsa_kernel
"""

class Asm:
    def __init__(self): self.l = []
    def __call__(self, s):
        for x in s.strip("\n").split("\n"): self.l.append("    " + x.strip() if not x.strip().endswith(":") else x.strip())
    def text(self): return "\n".join(self.l)
```

```python
import re

def regs(op):
    op = op.strip().lstrip("-")
    if op.startswith("abs("): op = op[4:-1]
    if op.startswith("|"): op = op.strip("|")
    m = re.fullmatch(r"([vas])(\d+)", op)
    if m: return {(m.group(1), int(m.group(2)))}
    m = re.fullmatch(r"([vas])\[(\d+):(\d+)\]", op)
    if m: return {(m.group(1), i) for i in range(int(m.group(2)), int(m.group(3))+1)}
    if op in ("vcc", "vcc_lo", "vcc_hi"): return {("s", "vcc")}
    if op in ("exec", "exec_lo", "exec_hi"): return {("s", "exec")}
    if op == "m0": return {("s", "m0")}
    return set()

TRANS = ("v_exp_", "v_log_", "v_rcp_", "v_rsq_", "v_sqrt_", "v_sin_", "v_cos_")

class I:
    def __init__(self, text):
        self.text = text
        t = text.split(";")[0].strip()
        self.label = t[:-1] if t.endswith(":") else None
        self.dir = t.startswith(".") or not t
        self.mn = "" if (self.label or self.dir) else t.split()[0]
        rest = t[len(self.mn):].strip() if self.mn else ""
        parts = [p.strip() for p in re.split(r",(?![^\[]*\])", rest)] if rest else []
        self.mods = ""
        if parts:
            last = parts[-1].split(None, 1)
            parts[-1] = last[0]
            self.mods = last[1] if len(last) > 1 else ""
        self.ops = parts
        mn = self.mn
        self.mfma = mn.startswith("v_mfma") or mn.startswith("v_smfmac")
        self.valu = mn.startswith("v_") and not self.mfma
        self.trans = mn.startswith(TRANS)
        self.dpp = mn.endswith("_dpp")
        self.perml = mn.startswith("v_permlane")
        self.dot = mn.startswith("v_dot")
        self.vmem = mn.startswith(("buffer_", "global_"))
        self.ds = mn.startswith("ds_")
        self.rdl = mn.startswith(("v_readlane", "v_readfirstlane"))
        self.branch = mn.startswith(("s_cbranch", "s_branch"))
        self.lds_dma = self.vmem and ("lds" in self.mods.split() or "load_lds" in mn)
        R = [regs(o) for o in parts]
        U = lambda xs: set().union(*xs) if xs else set()
        self.w = set(); self.r = set(); self.A = self.B = self.C = set(); self.stdata = set()
        if self.mfma:
            self.w = R[0]; self.A, self.B, self.C = R[1], R[2], R[3]; self.r = U(R[1:])
            if mn.startswith("v_smfmac"): self.B = R[2] | R[3]; self.C = R[0]; self.r |= R[0]
        elif self.valu:
            if mn.startswith("v_nop"): pass
            elif self.perml: self.w = U(R); self.r = U(R)
            elif "_co_" in mn or mn.startswith(("v_div_scale", "v_mad_u64")): self.w = R[0] | R[1]; self.r = U(R[2:])
            else:
                self.w = R[0]; self.r = U(R[1:])
                if mn.startswith(("v_fmac", "v_dot2c", "v_pk_fmac")) or self.dpp: self.r |= R[0]
        elif self.vmem:
            if mn in ("buffer_wbl2", "buffer_inv"): pass
            elif self.lds_dma: self.r = U(R) | {("s", "m0")}
            elif "_load_" in mn or ("atomic" in mn and "sc0" in self.mods.split() and mn.startswith("global") and len(parts) == 4): self.w = R[0]; self.r = U(R[1:])
            else:
                self.r = U(R)
                if mn.endswith(("x3", "x4")): self.stdata = R[0] if mn.startswith("buffer_") else R[1]
        elif self.ds:
            if "read" in mn or "permute" in mn or "swizzle" in mn: self.w = R[0]; self.r = U(R[1:])
            else: self.r = U(R)
        elif mn.startswith("s_") and parts and not mn.startswith(("s_cmp", "s_bitcmp", "s_waitcnt", "s_nop", "s_sleep", "s_setprio")) and not self.branch:
            self.w = R[0]; self.r = U(R[1:])
            if "saveexec" in mn: self.w |= {("s", "exec")}
        self.states = 0 if (self.label or self.dir) else (int(parts[0], 0)+1 if mn == "s_nop" else 1)
        self.passes = 8 if "32x32" in mn else (2 if "4x4x4" in mn else 4)

def vg(s): return {x for x in s if x[0] in "va"}
def sg(s): return {x for x in s if x[0] == "s"}

def need(p, c):
    n = 0
    if p.valu:
        wv = vg(p.w); ws = sg(p.w)
        if c.mfma and wv & c.r: n = max(n, 2)
        if c.dpp and wv & c.r: n = max(n, 2)
        if c.perml and wv & c.r: n = max(n, 2)
        if c.rdl and wv & c.r: n = max(n, 1)
        if p.trans and c.valu and wv & c.r: n = max(n, 1)
        if ws:
            if c.valu and ws & c.r: n = max(n, 4 if c.mn.startswith(("v_readlane", "v_writelane")) else 2)
            if c.vmem and ws & c.r: n = max(n, 5)
        if p.dot and (c.valu or c.mfma or c.vmem or c.ds) and wv & (c.r | c.w):
            same_c = c.mn == p.mn and not (wv & (regs(c.ops[1]) | regs(c.ops[2])))
            if not same_c: n = max(n, 3)
    if p.mfma:
        t = {2: (2, 4, 5, 5, 1), 4: (0, 6, 8, 8, 3), 8: (0, 10, 12, 12, 7)}[p.passes]
        if c.mfma:
            if p.w & c.C: n = max(n, t[0] if (p.w == c.C and p.passes == c.passes) else t[1])
            if p.w & (c.A | c.B): n = max(n, t[2])
        elif c.valu or c.vmem or c.ds:
            if p.w & (c.r | c.w): n = max(n, t[3])
            if c.valu and p.C & c.w: n = max(n, t[4])
    if p.mn.startswith("s_") and ("s", "m0") in p.w and c.lds_dma: n = max(n, 1)
    if p.stdata and p.stdata & c.w: n = max(n, 2 if c.valu else 1)
    return n

def missing(hist, c):
    d = 0; worst = 0
    for p in reversed(hist):
        if d >= 12: break
        if p.states:
            worst = max(worst, need(p, c) - d)
            d += p.states
    return worst

def fix(lines):
    out = []; hist = []; pads = 0
    for t in lines:
        c = I(t)
        if c.states:
            m = missing(hist, c)
            if m > 0:
                nop = I(f"    s_nop {m-1}"); out.append(nop); hist.append(nop); pads += m
        out.append(c); hist.append(c)
        if c.mn in ("s_branch", "s_endpgm", "s_setpc_b64"): hist = []
    lab = {c.label: i for i, c in enumerate(out) if c.label}
    for i, c in enumerate(out):
        if c.branch:
            h = []
            for p in reversed(out[:i]):
                if p.mn in ("s_branch", "s_endpgm") or len(h) > 30: break
                h.insert(0, p)
            h.append(c)
            j = lab[c.ops[0]]; d = 0
            while d < 12 and j < len(out):
                x = out[j]
                if x.states:
                    if missing(h, x) > 0: raise RuntimeError(f"hazard across branch '{c.text.strip()}' at '{x.text.strip()}'")
                    d += x.states
                h.append(x)
                if x.mn == "s_branch": j = lab[x.ops[0]]; continue
                if x.mn == "s_endpgm": break
                j += 1
    return [c.text for c in out], pads
```

```python
import sys, struct, math
from asmlib import *
import hazard

HEADER = open("interleave_layers__gqa_block_cached__glu_gated_bilinear__decode.s.ref").read().split("; Override launch")[0]

LSTRIDE = 393216
OFF_H1, OFF_ST, OFF_Y, OFF_H, OFF_X = 0, 262144, 270336, 303104, 319488
OFF_Q2, OFF_Q1 = 786432, 1 << 20
OFF_STAMP = 2 << 20
WS_REC = 4 << 20
L_WD = 131072
L_OC = L_WD + 8192
L_AST = L_OC + 4*2112
L_RED = L_AST + 128
L_RES = L_RED + 1024
L_STAT = L_RES + 256
L_CSQ = L_STAT + 128
L_CSF = L_CSQ + 256
L_END = L_CSF + 256
vST, vL16 = 0, 1
vTR = 2
vCSQ, vCSF = 10, 11
vKAP, vT0, vMK, vLS, vOCW, vOCR, vH1O, vASW = 12, 13, 14, 15, 16, 17, 18, 19
vONE = 20
vP, vACC, vSTG = 24, 32, 64
vS = 64
vQ, vBV, vMSK = 32, 36, 44
vKD, vKR, vVD, vWA, vPOLL = 48, 52, 56, 58, 60
vA, vD, vD1, vDG = 24, 56, 60, 64
vF = 68
vWQ, vWO, vWGU, vV = 80, 96, 112, 128
sW, sX, sR, sB, sLAY = 3, 4, 5, 6, 7
sKV, sLB, sSLOW, sBUD = 24, 25, 26, 27
pX, pK, pV, pWQ, pWO, pWG, pWU, pWD, pOUT, pDBG, pWS = 36, 38, 40, 42, 44, 48, 50, 52, 54, 56, 58
sH1S, sSTS, sH1L, sH1L2, sSTL, sYS, sXS, sYL, sYL2, sXL, sXL2, sHS, sHL, sQS, sQL, sFS, sFL = range(60, 77)
sSI = 77
sB0, sDIAG = 78, 80
sXCC = 82

def f32(x): return "0x%08x" % struct.unpack("<I", struct.pack("<f", x))[0]
def vr(a, n=4): return f"v[{a}:{a+n-1}]" if n > 1 else f"v{a}"
def ar(a, n=4): return f"a[{a}:{a+n-1}]"
DPP = "row_mask:0xf bank_mask:0xf"
MF = "v_mfma_f32_16x16x32_bf16"

class G(Asm):
    def __init__(self, opt):
        super().__init__(); self.o = opt; self.vm = []; self.tail = []; self.n = 0
    def uid(self, p): self.n += 1; return f"L_{p}{self.n}"
    def vmem(self, text, tag): self(text); self.vm.append(tag)
    def cnt(self, tag):
        last = max(i for i, t in enumerate(self.vm) if t == tag)
        n = len(self.vm) - 1 - last; assert n < 63, (tag, n); return n
    def stamp(self):
        if self.o["diag"]:
            self(f"s_memrealtime s[34:35]\ns_waitcnt lgkmcnt(0)\ns_mov_b32 m0, s{sSI}\nv_writelane_b32 v{vST}, s34, m0\ns_add_u32 s{sSI}, s{sSI}, 1")
    def srd(self, base, ptr, size):
        self(f"s_mov_b32 s{base}, s{ptr}\ns_and_b32 s{base+1}, s{ptr+1}, 0xffff\ns_mov_b32 s{base+2}, {size}\ns_mov_b32 s{base+3}, 0x20000")
    def out_of_line(self, text): self.tail.append(text)
    def pub_intra(self, stores):
        l = self.uid("slow"); self(f"s_cmp_lg_u32 s{sSLOW}, 0\ns_cbranch_scc1 {l}")
        for s in stores: self(s)
        self(f"{l}b:")
        self.out_of_line(f"{l}:\n" + "\n".join(s + " sc1" if s.startswith("buffer_") else s for s in stores) + f"\ns_branch {l}b")
    def retry_stub(self, name, body, back, giveup):
        self.out_of_line(f"{name}:\ns_cmp_eq_u32 s{sBUD}, 0\ns_cbranch_scc1 {giveup}\ns_sub_u32 s{sBUD}, s{sBUD}, 1\n{body}\ns_branch {back}")
    def check(self, regs, tmp):
        regs = list(regs)
        if len(regs) == 2: self(f"v_max_u32 v{tmp}, v{regs[0]}, v{regs[1]}")
        else:
            self(f"v_max3_u32 v{tmp}, v{regs[0]}, v{regs[1]}, v{regs[2]}"); k = 3
            while k + 1 < len(regs): self(f"v_max3_u32 v{tmp}, v{tmp}, v{regs[k]}, v{regs[k+1]}"); k += 2
            if k < len(regs): self(f"v_max_u32 v{tmp}, v{tmp}, v{regs[k]}")
        self(f"v_cmp_eq_u32 vcc, -1, v{tmp}")
    def butterfly(self, r):
        self(f"""v_permlane32_swap_b32 v{r}, v{r+2}
        v_permlane32_swap_b32 v{r+1}, v{r+3}
        v_add_f32 v{r}, v{r}, v{r+2}
        v_add_f32 v{r+1}, v{r+1}, v{r+3}
        v_permlane16_swap_b32 v{r}, v{r+1}
        v_add_f32 v{r}, v{r}, v{r+1}""")
    def allred_rows(self, r, t, op):
        for sw in ("16", "32"): self(f"v_mov_b32 v{t}, v{r}\nv_permlane{sw}_swap_b32 v{t}, v{r}\n{op} v{r}, v{t}, v{r}")
    def lane(self, d): self(f"v_lshrrev_b32 v{d}, 4, v{vL16}")

def stats_write(a):
    a.butterfly(vD1); a.butterfly(vDG)
    a(f"""v_add_f32_dpp v{vDG}, v{vDG}, v{vDG} row_ror:4 {DPP}
    v_lshrrev_b32 v{vDG+1}, 8, v{vL16}
    v_lshlrev_b32 v{vDG+1}, 4, v{vDG+1}
    v_add_f32_dpp v{vDG}, v{vDG}, v{vDG} row_ror:8 {DPP}
    s_lshl_b32 s28, s{sW}, 2
    s_add_u32 s28, s28, {L_STAT}
    v_add_u32 v{vDG+1}, s28, v{vDG+1}
    s_mov_b64 exec, s[{sDIAG}:{sDIAG+1}]
    ds_write2_b32 v{vDG+1}, v{vD1}, v{vDG} offset0:0 offset1:16
    s_mov_b64 exec, -1""")

def stats_read(a, vaddr, t):
    a(f"ds_read_b128 {vr(t)}, v{vaddr}\nds_read_b128 {vr(t+4)}, v{vaddr} offset:64")
def stats_var(a, t):
    a(f"""v_add_f32 v{t}, v{t}, v{t+1}
    v_add_f32 v{t+2}, v{t+2}, v{t+3}
    v_add_f32 v{t+4}, v{t+4}, v{t+5}
    v_add_f32 v{t+6}, v{t+6}, v{t+7}
    v_add_f32 v{t}, v{t}, v{t+2}
    v_add_f32 v{t+4}, v{t+4}, v{t+6}
    v_mul_f32 v{t+1}, {f32(1/512)}, v{t}
    v_mul_f32 v{t+4}, {f32(1/512)}, v{t+4}
    v_fma_f32 v{t+4}, -v{t+1}, v{t+1}, v{t+4}
    v_max_f32 v{t+4}, 0, v{t+4}
    v_add_f32 v{t+4}, {f32(1e-5)}, v{t+4}""")
KC = math.log2(math.e) / math.sqrt(128.0)

def fin_addr(a, d, t):
    a(f"""v_lshrrev_b32 v{d}, 8, v{vL16}
    v_and_b32 v{d}, 1, v{d}
    v_lshlrev_b32 v{d}, 5, v{d}
    v_and_b32 v{t}, 0xc0, v{vL16}
    v_add_u32 v{d}, v{d}, v{t}
    v_and_b32 v{t}, 0x30, v{vL16}
    v_lshrrev_b32 v{t}, 1, v{t}
    v_add_u32 v{d}, v{d}, v{t}
    v_add_u32 v{d}, {L_RED}, v{d}""")
def red_waddr(a, d):
    a(f"s_lshl_b32 s28, s{sW}, 8\ns_add_u32 s28, s28, {L_RED}\nv_lshrrev_b32 v{d}, 2, v{vL16}\nv_add_u32 v{d}, s28, v{d}")
def red_sum(a, addr, t):
    a(f"""ds_read2_b64 {vr(t)}, v{addr} offset0:0 offset1:32
    ds_read2_b64 {vr(t+4)}, v{addr} offset0:64 offset1:96
    s_waitcnt lgkmcnt(1)
    v_pk_add_f32 {vr(t,2)}, {vr(t,2)}, {vr(t+2,2)}
    s_waitcnt lgkmcnt(0)
    v_pk_add_f32 {vr(t+4,2)}, {vr(t+4,2)}, {vr(t+6,2)}
    v_pk_add_f32 {vr(t,2)}, {vr(t,2)}, {vr(t+4,2)}""")

def gather(a, name, s0, s1, per_load, shadow, pre=None):
    ld = lambda i: f"buffer_load_dwordx4 {vr(vA+4*i)}, v{vL16}, s[16:19], s{s0 if i < 4 else s1} offen offset:{1024*(i%4)} sc1"
    if pre: a(pre["ld"])
    for i in range(8): a(ld(i))
    shadow()
    if pre:
        a(f"s_waitcnt vmcnt(8)"); a.check(pre["regs"], vT0); a(f"s_cbranch_vccnz L_{name}_rp\nL_{name}_gp:")
        chk = G(a.o); chk.check(pre["regs"], vT0)
        a.retry_stub(f"L_{name}_rp", pre["ld"] + "\ns_waitcnt vmcnt(0)\n" + chk.text() + f"\ns_cbranch_vccnz L_{name}_rp\n" + "\n".join(ld(i) for i in range(8)), f"L_{name}_gp", f"L_{name}_gp")
        pre["use"]()
    for i in range(8):
        a(f"L_{name}_w{i}:\ns_waitcnt vmcnt({7-i})"); a.check(range(vA+4*i, vA+4*i+4), vT0)
        a(f"s_cbranch_vccnz L_{name}_r{i}\nL_{name}_g{i}:")
        a.retry_stub(f"L_{name}_r{i}", "\n".join(ld(k) for k in range(i, 8)), f"L_{name}_w{i}", f"L_{name}_g{i}")
        per_load(i)

def ln_gemv(a, name, s0, s1, w, cs, shadow):
    def per(i):
        t, mt = i >> 1, i & 1; A = vr(vA+4*i); z = lambda d: "0" if i == 0 else vr(d)
        a(f"{MF} {vr(vD)}, {A}, {vr(w+4*t)}, {z(vD)}\n{MF} {vr(vD1)}, {A}, {vr(vONE)}, {z(vD1)}")
        a(f"{MF} {vr(vDG)}, {A}, {A}, {z(vDG)}")
        if mt:
            A0 = vr(vA+4*i-4); a(f"{MF} {vr(vDG)}, {A0}, {A}, {vr(vDG)}\n{MF} {vr(vDG)}, {A}, {A0}, {vr(vDG)}")
    def sh(): red_waddr(a, vF); shadow()
    gather(a, name, s0, s1, per, sh)
    for r in range(4): a(f"v_fma_f32 v{vD+r}, -v{vD1+r}, v{cs}, v{vD+r}")
    a.butterfly(vD)
    a(f"ds_write_b32 v{vF}, v{vD}\ns_waitcnt lgkmcnt(0)\ns_barrier")

def gen(**kw):
    o = dict(diag=False, D=3, wpol="", kvpol=" nt", order=None, kp=13, touch=True, force_slow=False); o.update(kw)
    a = G(o); D = o["D"]; wp = o["wpol"]; kp_ = o["kvpol"]
    a(f"""
    s_cmp_ge_u32 s2, 256
    s_cbranch_scc1 L_end
    s_load_dwordx16 s[36:51], s[0:1], 0
    s_load_dwordx8 s[52:59], s[0:1], 64
    v_lshrrev_b32 v2, 6, v0
    v_and_b32 v3, 63, v0
    v_readfirstlane_b32 s{sW}, v2
    v_lshlrev_b32 v{vL16}, 4, v3
    v_mov_b32 v{vPOLL+2}, v0
    s_and_b32 s{sX}, s2, 7
    s_lshr_b32 s{sR}, s2, 3
    s_and_b32 s{sB}, s{sR}, 3
    s_lshl_b32 s28, s{sB}, 3
    s_add_u32 s28, s28, s{sX}
    s_lshl_b32 s{sKV}, s28, 21
    s_lshr_b32 s28, s{sR}, 2
    s_lshl_b32 s28, s28, 18
    s_add_u32 s{sKV}, s{sKV}, s28
    s_lshl_b32 s28, s{sW}, 12
    s_add_u32 s{sKV}, s{sKV}, s28
    s_lshl_b32 s{sLB}, s{sW}, 15
    v_lshrrev_b32 v2, 4, v3
    v_lshlrev_b32 v4, 4, v2
    v_xor_b32 v{vKD}, v{vL16}, v4
    v_xor_b32 v{vKD+1}, 64, v{vKD}
    v_xor_b32 v{vKD+2}, 0x80, v{vKD}
    v_xor_b32 v{vKD+3}, 0xc0, v{vKD}
    s_mov_b32 s{sSI}, 0
    s_waitcnt lgkmcnt(0)
    """)
    a.stamp()
    a.srd(8, pK, 64 << 20)
    seq = o["order"] or (["K0", "K1", "Wq"] + [f"K{i}" for i in range(2, 16)] + ["Wo", "Wg"] + [f"V{i}" for i in range(16)])
    N = len(seq); slot = {t: i % 8 for i, t in enumerate(seq)}

    def w32(tag, ptr, size, stride, row0, col0, dest, n):
        a.srd(20, ptr, size)
        a(f"v_lshrrev_b32 v{vWA}, 5, v{vL16}\nv_mul_u32_u24 v{vWA}, {stride}, v{vWA}\nv_and_b32 v{vWA+1}, 16, v{vL16}\nv_add_u32 v{vWA}, v{vWA}, v{vWA+1}")
        row0(); a(f"s_mul_i32 s28, s28, {stride}"); col0(); a("s_add_u32 s28, s28, s29"); dest()
        for u in range(n):
            a(f"s_add_u32 m0, s29, {1024*u}\ns_add_u32 s30, s28, {32*u*stride}")
            a.vmem(f"buffer_load_dwordx4 v{vWA}, s[20:23], s30 offen{wp} lds", tag)
    def issue(t):
        sl = slot[t]*4096
        if t[0] in "KV":
            T = int(t[1:]); a(f"s_add_u32 m0, s{sLB}, {sl}\ns_add_u32 s28, s{sKV}, {T*16384}")
            for j in range(4):
                va, srd = (vKD+j, "s[8:11]") if t[0] == "K" else (vVD+(j & 1), "s[12:15]")
                a.vmem(f"buffer_load_dwordx4 v{va}, {srd}, s28 offen offset:{1024*j}{kp_} lds", t)
        elif t == "Wq":
            w32(t, pWQ, 4 << 20, 8192, lambda: a(f"s_lshl_b32 s28, s{sW}, 7"),
                lambda: a(f"s_lshl_b32 s29, s{sX}, 10\ns_lshl_b32 s30, s{sR}, 5\ns_add_u32 s29, s29, s30"), lambda: a(f"s_add_u32 s29, s{sLB}, {sl}"), 4)
            extras()
        elif t == "Wo":
            w32("Wd", pWD, 1792*1024, 1024, lambda: a(f"s_mul_i32 s28, s{sX}, 224\ns_lshl_b32 s29, s{sW}, 6\ns_add_u32 s28, s28, s29"),
                lambda: a(f"s_lshl_b32 s29, s{sR}, 5"), lambda: a(f"s_lshl_b32 s29, s{sW}, 11\ns_add_u32 s29, s29, {L_WD}"), 2)
            w32(t, pWO, 4 << 20, 1024, lambda: a(f"s_lshl_b32 s28, s{sX}, 9\ns_lshl_b32 s29, s{sW}, 7\ns_add_u32 s28, s28, s29"),
                lambda: a(f"s_lshl_b32 s29, s{sR}, 5"), lambda: a(f"s_add_u32 s29, s{sLB}, {sl}"), 4)
        elif t == "Wg":
            a(f"v_mul_u32_u24 v{vWA}, 224, v{vL16}")
            a(f"s_mul_i32 s28, s{sW}, {128*3584}\ns_mul_i32 s29, s{sX}, 448\ns_add_u32 s28, s28, s29\ns_lshl_b32 s29, s{sR}, 4\ns_add_u32 s28, s28, s29")
            for mat, ptr in enumerate((pWG, pWU)):
                a.srd(20, ptr, 1792*1024)
                for u in range(2):
                    a(f"s_add_u32 m0, s{sLB}, {sl + 2048*mat + 1024*u}\ns_add_u32 s30, s28, {64*u*3584}")
                    a.vmem(f"buffer_load_dwordx4 v{vWA}, s[20:23], s30 offen{wp} lds", t)
    def touch_code():
        if not o["touch"]: return
        l = a.uid("pc")
        a(f"""s_getpc_b64 s[28:29]
        {l}:
        s_sub_u32 s28, s28, {l}-{KNAME}
        s_subb_u32 s29, s29, 0
        v_lshlrev_b32 v{vT0}, 7, v{vPOLL+2}
        v_min_u32 v{vT0}, L_codeend-{KNAME}-4, v{vT0}
        v_mov_b32 v{vLS}, s29
        v_add_co_u32 v{vMK}, vcc, s28, v{vT0}
        v_addc_co_u32 v{vLS}, vcc, 0, v{vLS}, vcc""")
        a.vmem(f"global_load_dword v{vT0}, v[{vMK}:{vLS}], off", "touch")
    def extras():
        a.srd(16, pWS, WS_REC); a.srd(12, pV, 64 << 20); a.srd(20, pX, 4096)
        a(f"s_mov_b32 s{sB0}, 0x000f000f\ns_mov_b32 s{sB0+1}, 0x000f000f\ns_mov_b32 s{sDIAG}, 0x00020001\ns_mov_b32 s{sDIAG+1}, 0x00080004")
        for i in range(16): a(f"v_mov_b32 v{vA+i}, 0")
        for i in range(4): a(f"v_mov_b32 v{vF+i}, -1")
        a(f"""v_and_b32 v{vF+4}, 0xf0, v{vL16}
        v_lshlrev_b32 v{vF+4}, 6, v{vF+4}
        v_lshrrev_b32 v{vF+5}, 8, v{vL16}
        v_lshl_add_u32 v{vF+4}, v{vF+5}, 4, v{vF+4}
        s_lshl_b32 s28, s{sW}, 8
        s_mov_b64 exec, s[{sB0}:{sB0+1}]""")
        for t in range(4): a.vmem(f"buffer_load_dwordx4 {vr(vA+4*t)}, v{vF+4}, s[20:23], s28 offen offset:{64*t}", "Wq")
        a(f"""s_mov_b64 exec, -1
        v_lshlrev_b32 v{vF+5}, 10, v{vF+5}
        v_and_b32 v{vF+6}, 0xf0, v{vL16}
        v_lshrrev_b32 v{vF+6}, 3, v{vF+6}
        v_add_u32 v{vF+5}, v{vF+5}, v{vF+6}
        s_lshl_b32 s28, s{sR}, 5""")
        a.vmem(f"buffer_load_ushort v{vF+7}, v{vF+5}, s[20:23], s28 offen", "Wq")
        a(f"s_lshl_b32 s28, s2, 12\ns_lshl_b32 s29, s{sW}, 10\ns_add_u32 s28, s28, s29")
        a.vmem(f"buffer_store_dwordx4 {vr(vF)}, v{vL16}, s[16:19], s28 offen sc1", "Wq")
        touch_code()
    def consts():
        a(f"""v_lshrrev_b32 v{vVD}, 8, v{vL16}
        v_lshlrev_b32 v{vVD}, 5, v{vVD}
        v_xor_b32 v{vVD}, v{vL16}, v{vVD}
        v_xor_b32 v{vVD+1}, 0x80, v{vVD}
        v_and_b32 v{vKR}, 0xf0, v{vL16}
        v_lshrrev_b32 v{vKR+1}, 8, v{vL16}
        v_lshlrev_b32 v{vKR+1}, 4, v{vKR+1}
        v_xor_b32 v{vKR+1}, v{vKR+1}, v{vKR}
        v_lshl_add_u32 v{vKR}, v{vKR}, 4, v{vKR+1}
        v_add_u32 v{vKR}, s{sLB}, v{vKR}
        v_xor_b32 v{vKR+1}, 64, v{vKR}
        v_xor_b32 v{vKR+2}, 0x80, v{vKR}
        v_xor_b32 v{vKR+3}, 0xc0, v{vKR}
        v_lshrrev_b32 v{vTR}, 6, v{vL16}
        v_and_b32 v{vTR+1}, 7, v{vTR}
        v_lshlrev_b32 v{vTR+1}, 5, v{vTR+1}
        v_lshl_add_u32 v{vTR}, v{vTR}, 8, v{vTR+1}
        v_and_b32 v{vTR+1}, 0x30, v{vL16}
        v_lshrrev_b32 v{vTR+1}, 1, v{vTR+1}
        v_add3_u32 v{vTR}, v{vTR}, v{vTR+1}, s{sLB}""")
        for j in range(1, 8): a(f"v_xor_b32 v{vTR+j}, {32*j}, v{vTR}")
        for i in range(4): a(f"v_mov_b32 v{vONE+i}, 0x3f803f80")
        a(f"""s_mov_b32 s{sLAY}, 0
        s_mov_b32 s{sBUD}, 0x40000
        s_lshl_b32 s28, s{sX}, 15
        s_lshl_b32 s29, s{sW}, 13
        s_add_u32 s{sH1L}, s28, s29
        s_add_u32 s{sH1L2}, s{sH1L}, 4096
        s_lshr_b32 s28, s{sR}, 4
        s_lshl_b32 s28, s28, 10
        s_and_b32 s30, s{sR}, 15
        s_lshl_b32 s30, s30, 4
        s_add_u32 s28, s28, s30
        s_add_u32 s{sH1S}, s{sH1L}, s28
        s_add_u32 s{sYL}, s29, {OFF_Y}
        s_add_u32 s{sYL2}, s29, {OFF_Y+4096}
        s_add_u32 s{sXL}, s29, {OFF_X}
        s_add_u32 s{sXL2}, s29, {OFF_X+4096}
        s_lshl_b32 s28, s{sX}, 10
        s_lshl_b32 s29, s{sW}, 8
        s_add_u32 s28, s28, s29
        s_add_u32 s{sSTL}, s28, {OFF_ST}
        s_lshl_b32 s28, s{sR}, 3
        s_add_u32 s{sSTS}, s{sSTL}, s28
        s_lshr_b32 s28, s{sR}, 1
        s_lshl_b32 s28, s28, 11
        s_lshr_b32 s29, s{sX}, 2
        s_lshl_b32 s29, s29, 10
        s_add_u32 s28, s28, s29
        s_and_b32 s29, s{sR}, 1
        s_lshl_b32 s31, s29, 9
        s_add_u32 s28, s28, s31
        s_and_b32 s29, s{sX}, 3
        s_lshl_b32 s29, s29, 6
        s_add_u32 s28, s28, s29
        s_add_u32 s{sYS}, s28, {OFF_Y}
        s_add_u32 s{sXS}, s28, {OFF_X}
        s_lshl_b32 s28, s{sX}, 11
        s_add_u32 s{sHL}, s28, {OFF_H}
        s_lshr_b32 s28, s{sR}, 4
        s_lshl_b32 s28, s28, 10
        s_and_b32 s29, s{sR}, 3
        s_lshl_b32 s29, s29, 8
        s_add_u32 s28, s28, s29
        s_lshr_b32 s29, s{sR}, 2
        s_and_b32 s29, s29, 3
        s_lshl_b32 s29, s29, 6
        s_add_u32 s28, s28, s29
        s_add_u32 s{sHS}, s{sHL}, s28
        s_lshl_b32 s28, s{sX}, 12
        s_lshl_b32 s29, s{sB}, 10
        s_add_u32 s{sQL}, s28, s29
        s_add_u32 s28, s28, s31
        s_and_b32 s29, s{sR}, 6
        s_lshl_b32 s29, s29, 5
        s_add_u32 s28, s28, s29
        s_lshr_b32 s29, s{sR}, 3
        s_lshl_b32 s29, s29, 4
        s_add_u32 s{sQS}, s28, s29
        s_lshl_b32 s28, s{sR}, 11
        s_add_u32 s{sFL}, s28, {OFF_X}
        s_lshl_b32 s28, s{sX}, 8
        s_add_u32 s{sFS}, s{sFL}, s28
        s_getreg_b32 s{sXCC}, hwreg(HW_REG_XCC_ID, 0, 3)""")
    def w32_traddr(d, base):
        a(f"""v_lshrrev_b32 v{d}, 8, v{vL16}
        v_lshlrev_b32 v{d}, 8, v{d}
        v_and_b32 v{d+1}, 0xf0, v{vL16}
        v_lshrrev_b32 v{d+1}, 1, v{d+1}
        v_add_u32 v{d}, v{d}, v{d+1}
        v_add_u32 v{d}, {base}, v{d}""")
    def colsum(w, dst, t):
        for k in range(4): a(f"{MF} {vr(t)}, {vr(vONE)}, {vr(w+4*k)}, {'0' if k == 0 else vr(t)}")
        a(f"""s_lshl_b32 s28, s{sW}, 2
        s_add_u32 s28, s28, {dst}
        v_and_b32 v{vWA}, 0xf0, v{vL16}
        v_add_u32 v{vWA}, s28, v{vWA}
        ds_write_b32 v{vWA}, v{t}""")
    def colsum_read(dst, cs, t, ta):
        a(f"""v_and_b32 v{ta}, 0xf0, v{vL16}
        v_add_u32 v{ta}, {dst}, v{ta}
        ds_read_b128 {vr(t)}, v{ta}
        s_waitcnt lgkmcnt(0)
        v_add_f32 v{t}, v{t}, v{t+1}
        v_add_f32 v{t+2}, v{t+2}, v{t+3}
        v_add_f32 v{t}, v{t}, v{t+2}
        v_mul_f32 v{cs}, {f32(1/512)}, v{t}""")
    def q_lane_off(d, t):
        a(f"""v_and_b32 v{d}, 0xc0, v{vL16}
        v_lshlrev_b32 v{d}, 4, v{d}
        v_and_b32 v{t}, 0x100, v{vL16}
        v_add_u32 v{d}, v{d}, v{t}
        v_and_b32 v{t}, 0x30, v{vL16}
        v_lshrrev_b32 v{t}, 2, v{t}
        v_add_u32 v{d}, v{d}, v{t}""")
    def kappa(t, ta):
        a(f"s_lshl_b32 s28, s{sB}, 4\ns_add_u32 s28, s28, {L_STAT}\nv_mov_b32 v{ta}, s28"); stats_read(a, ta, t)
        a("s_waitcnt lgkmcnt(0)"); stats_var(a, t)
        a(f"v_rsq_f32 v{t+4}, v{t+4}\nv_mul_f32 v{vKAP}, {f32(KC)}, v{t+4}")
    def q1_phase():
        qD, qD1, qDG, T = 40, 60, 64, 72
        a("s_waitcnt lgkmcnt(0)")
        for t in range(4):
            A = vr(vA+4*t); z = lambda d: "0" if t == 0 else vr(d)
            a(f"{MF} {vr(qD)}, {A}, {vr(vWQ+4*t)}, {z(qD)}\n{MF} {vr(44)}, {A}, {vr(vONE)}, {z(44)}\n{MF} {vr(qDG)}, {A}, {A}, {z(qDG)}")
        a(f"v_lshlrev_b32 v{vF+7}, 16, v{vF+7}\nv_mul_f32 v{vF+7}, 0x3e000000, v{vF+7}\nv_lshrrev_b32 v{vF}, 2, v{vL16}\nv_add_u32 v{vF}, {L_RES}, v{vF}\nds_write_b32 v{vF}, v{vF+7}")
        colsum(vWQ, L_CSQ, 76)
        a(f"v_mov_b32 v{vF+1}, v{vPOLL+2}")
        for r in range(4): a(f"v_mov_b32 v{vD1+r}, v{44+r}")
        stats_write(a)
        a(f"v_mov_b32 v{vPOLL+2}, v{vF+1}")
        red_waddr(a, vF); a.butterfly(qD)
        a(f"ds_write_b32 v{vF}, v{qD}\ns_waitcnt lgkmcnt(0)\ns_barrier")
        colsum_read(L_CSQ, vCSQ, T, vF); kappa(T, vF)
        a(f"s_cmp_lg_u32 s{sW}, 0\ns_cbranch_scc1 L_q1_skip")
        fin_addr(a, vF, vF+1); red_sum(a, vF, vA)
        a(f"""v_subrev_u32 v{vF+1}, {L_RED}, v{vF}
        v_and_b32 v{vF+2}, 0x3c, v{vF+1}
        v_lshlrev_b32 v{vF+2}, 2, v{vF+2}
        v_add_u32 v{vF+2}, {L_CSQ}, v{vF+2}
        ds_read_b128 {vr(vA+8)}, v{vF+2}
        ds_read_b128 {vr(vA+12)}, v{vF+2} offset:16
        v_lshrrev_b32 v{vF+1}, 6, v{vF+1}
        v_lshlrev_b32 v{vF+1}, 4, v{vF+1}
        v_add_u32 v{vF+1}, {L_STAT}, v{vF+1}
        ds_read_b128 {vr(vA+4)}, v{vF+1}
        s_waitcnt lgkmcnt(0)""")
        for t in (vA+4, vA+8, vA+12): a(f"v_add_f32 v{t}, v{t}, v{t+1}\nv_add_f32 v{t+2}, v{t+2}, v{t+3}\nv_add_f32 v{t}, v{t}, v{t+2}")
        a(f"""v_mul_f32 v{vA+4}, {f32(1/512)}, v{vA+4}
        v_fma_f32 v{vA}, -v{vA+4}, v{vA+8}, v{vA}
        v_fma_f32 v{vA+1}, -v{vA+4}, v{vA+12}, v{vA+1}
        v_cvt_pk_bf16_f32 v{vA}, v{vA}, v{vA+1}""")
        q_lane_off(vF, vF+1)
        a(f"""s_add_u32 s28, s{sQS}, {OFF_Q1}
        s_mov_b32 exec_hi, 0
        buffer_store_dword v{vA}, v{vF}, s[16:19], s28 offen sc1
        s_mov_b64 exec, -1
        L_q1_skip:""")
    def consume(t):
        off = slot[t]*4096
        if t[0] == "K":
            T = int(t[1:])
            for k in range(4): a(f"ds_read_b128 {ar(16*T+4*k)}, v{vKR+k} offset:{off}")
        elif t[0] == "V":
            T = int(t[1:])
            for j in range(8): a(f"ds_read_b64_tr_b16 {vr(vV+32*(T>>1)+4*j+2*(T&1), 2)}, v{vTR+j} offset:{off}")
        elif t in ("Wq", "Wo"):
            w = vWQ if t == "Wq" else vWO
            w32_traddr(vWA, f"s{sLB}")
            for k in range(4):
                for h in range(2): a(f"ds_read_b64_tr_b16 {vr(w+4*k+2*h, 2)}, v{vWA} offset:{off+1024*k+128*h}")
        elif t == "Wg":
            a(f"""v_lshrrev_b32 v{vWA}, 8, v{vL16}
            v_lshlrev_b32 v{vWA}, 7, v{vWA}
            v_and_b32 v{vWA+1}, 0xc0, v{vL16}
            v_lshrrev_b32 v{vWA+1}, 2, v{vWA+1}
            v_add_u32 v{vWA}, v{vWA}, v{vWA+1}
            v_and_b32 v{vWA+1}, 0x20, v{vL16}
            v_lshl_add_u32 v{vWA}, v{vWA+1}, 6, v{vWA}
            v_and_b32 v{vWA+1}, 0x10, v{vL16}
            v_lshrrev_b32 v{vWA+1}, 1, v{vWA+1}
            v_add3_u32 v{vWA}, v{vWA}, v{vWA+1}, s{sLB}""")
            for k in range(4):
                for h in range(2): a(f"ds_read_b64_tr_b16 {vr(vWGU+4*k+2*h, 2)}, v{vWA} offset:{off+512*k+64*h}")
    poll_ld = f"global_load_dwordx2 v[{vPOLL}:{vPOLL+1}], v{vPOLL+3}, s[{pDBG}:{pDBG+1}] sc1"
    poll_chk = f"v_sad_u8 v{vT0}, v{vPOLL}, 0, 0\nv_sad_u8 v{vT0}, v{vPOLL+1}, 0, v{vT0}\nv_cmp_ne_u32 vcc, 32, v{vT0}"
    iq = seq.index("Wq"); kp = o["kp"]; k_last = seq.index("V7")
    k_atomic = iq + D + 1; k_chk = kp + D; k_qk = max(k_chk + D, seq.index("K15") + 1, seq.index("Wg") + 1)
    assert k_atomic < kp and k_qk <= k_last
    def step(k):
        t = seq[k]
        a(f"s_waitcnt vmcnt({a.cnt(t)}) lgkmcnt(0)")
        if k == k_atomic:
            a(f"""s_cmp_lg_u32 s{sW}, 0
            s_cbranch_scc1 L_noatom
            s_lshl_b32 s28, s{sXCC}, 3
            s_lshl_b64 s[28:29], 1, s28
            v_mov_b32 v{vPOLL}, s28
            v_mov_b32 v{vPOLL+1}, s29
            s_lshl_b32 s28, s{sX}, 5
            v_mov_b32 v{vPOLL+3}, s28
            s_mov_b64 exec, 1
            global_atomic_add_x2 v{vPOLL+3}, v[{vPOLL}:{vPOLL+1}], s[{pDBG}:{pDBG+1}] sc1
            s_mov_b64 exec, -1
            L_noatom:""")
        if k == kp:
            a(f"v_and_b32 v{vPOLL+3}, 0x70, v{vL16}\nv_lshlrev_b32 v{vPOLL+3}, 1, v{vPOLL+3}"); a.vmem(poll_ld, "poll")
        if k == k_chk:
            a(f"s_waitcnt vmcnt({a.cnt('poll')})\nL_init_w:\n{poll_chk}\ns_cbranch_vccnz L_init_r\nL_init_g:")
            a.retry_stub("L_init_r", poll_ld + "\ns_waitcnt vmcnt(0)", "L_init_w", "L_init_g")
            a(f"""v_readlane_b32 s28, v{vPOLL}, s{sX}
            v_readlane_b32 s29, v{vPOLL+1}, s{sX}
            s_lshl_b32 s30, s{sXCC}, 3
            s_lshl_b64 s[30:31], 32, s30
            s_cmp_lg_u64 s[28:29], s[30:31]
            s_cselect_b32 s{sSLOW}, 1, {1 if o['force_slow'] else 0}
            s_add_u32 s28, s{sQL}, {OFF_Q1}""")
            a.vmem(f"buffer_load_dwordx4 {vr(vQ)}, v{vL16}, s[16:19], s28 offen sc1", "q")
        if k + D < N and seq[k+D][0] != "W": issue(seq[k+D])
        consume(t)
        if k + D < N and seq[k+D][0] == "W": issue(seq[k+D])
        if t == "Wq": q1_phase()
        if t == "Wg": a("s_waitcnt lgkmcnt(0)"); colsum(vWGU, L_CSF, 72)
    assert iq < D
    for k in range(D): issue(seq[k])
    consts()
    for k in range(k_qk): step(k)
    a(f"s_waitcnt vmcnt({a.cnt('q')}) lgkmcnt(0)")

    a("L_att:"); a.stamp()
    a(f"v_and_b32 v{vT0}, 0xc0, v{vL16}")
    for cl in range(4): a(f"v_cmp_eq_u32 vcc, {64*cl}, v{vT0}\nv_cndmask_b32 v{vMSK+cl}, 0, -1, vcc")
    def bver(n):
        cl, t = n >> 2, n & 3; d = vBV + 4*(n & 1); rot = (4*(cl-t)) % 16
        return [f"v_and_b32 v{d+i}, v{vQ+i}, v{vMSK+cl}" if rot == 0 else f"v_and_b32_dpp v{d+i}, v{vQ+i}, v{vMSK+cl} row_ror:{rot} {DPP}" for i in range(4)]
    for s in bver(0): a(s)
    for n in range(16):
        cl, t = n >> 2, n & 3; nxt = bver(n+1) if n < 15 else []
        for ac in range(4):
            T = 8*(ac >> 1) + 2*cl + (ac & 1)
            a(f"{MF} {vr(vS+4*ac)}, {ar(16*T+4*t)}, {vr(vBV+4*(n&1))}, {'0' if n == 0 else vr(vS+4*ac)}")
            if nxt and ac < 2: a(nxt[2*ac]); a(nxt[2*ac+1])
    a(f"""s_mul_i32 s28, s{sW}, 2112
    s_add_u32 s28, s28, {L_OC}
    v_and_b32 v{vOCW}, 0x30, v{vL16}
    v_mul_u32_u24 v{vOCW}, 33, v{vOCW}
    v_lshrrev_b32 v{vOCR}, 8, v{vL16}
    v_lshl_add_u32 v{vOCW}, v{vOCR}, 4, v{vOCW}
    v_add_u32 v{vOCW}, s28, v{vOCW}""")
    a(f"v_max3_f32 v{vMK}, v{vS}, v{vS+1}, v{vS+2}\nv_max3_f32 v{vT0}, v{vS+3}, v{vS+4}, v{vS+5}")
    for k in range(6, 14, 4): a(f"v_max3_f32 v{vMK}, v{vMK}, v{vS+k}, v{vS+k+1}\nv_max3_f32 v{vT0}, v{vT0}, v{vS+k+2}, v{vS+k+3}")
    a(f"v_max3_f32 v{vMK}, v{vMK}, v{vS+14}, v{vS+15}\nv_max_f32 v{vMK}, v{vMK}, v{vT0}")
    a(f"v_max_f32_dpp v{vMK}, v{vMK}, v{vMK} row_ror:4 {DPP}\nv_max_f32_dpp v{vMK}, v{vMK}, v{vMK} row_ror:8 {DPP}")
    a.allred_rows(vMK, vT0, "v_max_f32")
    a(f"v_mul_f32 v{vMK}, v{vMK}, v{vKAP}")
    for k in range(16): a(f"v_fma_f32 v{vS+k}, v{vS+k}, v{vKAP}, -v{vMK}")
    for k in range(16): a(f"v_exp_f32 v{vS+k}, v{vS+k}")
    a(f"v_mov_b32 v{vLS}, 0")
    for k in range(8): a(f"v_cvt_pk_bf16_f32 v{vP+k}, v{vS+2*k}, v{vS+2*k+1}")
    a.stamp()
    a(f"s_cmp_lg_u32 s{sLAY}, 0\ns_cbranch_scc1 L_pv")
    for k in range(k_qk, k_last+1): step(k)
    a(f"v_mov_b32 v{vACC}, v{vMK}"); touch_code(); a(f"v_mov_b32 v{vMK}, v{vACC}\nv_mov_b32 v{vLS}, 0")
    for k in range(k_last+D+1, N):
        if k == N-1: a("s_waitcnt lgkmcnt(0)")
        issue(seq[k])
    a(f"s_waitcnt vmcnt({a.cnt('touch') if o['touch'] else 62}) lgkmcnt(0)")
    a("L_pv:"); a.stamp()
    order = [("R", 0, j) for j in range(8)]
    for c in range(3):
        for j in range(8): order += [("R", c+1, j), ("L", c, j)]
    order += [("L", 3, j) for j in range(8)]
    lops = [(c, j) for k, c, j in order if k == "L"]; LA = 3
    def lread(n):
        c, j = lops[n]; d = vSTG + 4*(n % 4)
        if j == 0: a(f"s_waitcnt vmcnt({a.cnt(f'V{9+2*c}')})")
        for h in range(2): a(f"ds_read_b64_tr_b16 {vr(d+2*h, 2)}, v{vTR+j} offset:{slot[f'V{8+2*c+h}']*4096}")
    fill = [f"v_dot2c_f32_bf16 v{vLS}, v{vP+k}, v{vONE}" for k in range(8)]
    nl = 0; issued = 0
    for idx, (k, c, j) in enumerate(order):
        if k == "R":
            if c > 0 and j == 0:
                for i in range(4): a(f"v_mov_b32_dpp v{vP+i}, v{vP+i} row_ror:12 {DPP}")
            a(f"{MF} {vr(vACC+4*j)}, {vr(vV+32*c+4*j)}, {vr(vP)}, {'0' if c == 0 else vr(vACC+4*j)}")
            if c == 0:
                a(fill[j])
                if j >= 8-LA: lread(issued); issued += 1
        else:
            if c > 0 and j == 0:
                for i in range(4): a(f"v_mov_b32_dpp v{vP+4+i}, v{vP+4+i} row_ror:12 {DPP}")
            a(f"s_waitcnt lgkmcnt({2*(issued-nl-1)})")
            a(f"{MF} {vr(vACC+4*j)}, {vr(vSTG+4*(nl%4))}, {vr(vP+4)}, {vr(vACC+4*j)}")
            nl += 1
            if issued < len(lops): lread(issued); issued += 1
        if idx == 9:
            a(f"v_add_f32_dpp v{vLS}, v{vLS}, v{vLS} row_ror:4 {DPP}")
        if idx == 11:
            a(f"v_add_f32_dpp v{vLS}, v{vLS}, v{vLS} row_ror:8 {DPP}")
        if idx == 13: a.allred_rows(vLS, vT0, "v_add_f32")
        if idx == 27:
            a(f"""s_mul_i32 s28, s{sW}, 528
            s_add_u32 s28, s28, {L_OC}
            v_lshrrev_b32 v{vOCR}, 1, v{vL16}
            v_add_u32 v{vOCR}, s28, v{vOCR}""")
        if idx == 29:
            a(f"""s_lshl_b32 s28, s{sW}, 3
            s_add_u32 s28, s28, {L_AST}
            v_and_b32 v{vASW}, 0x30, v{vL16}
            v_lshl_add_u32 v{vASW}, v{vASW}, 1, s28""")
        if idx == 31:
            a(f"""v_and_b32 v{vH1O}, 0x300, v{vL16}
            v_lshlrev_b32 v{vH1O}, 3, v{vH1O}
            v_and_b32 v{vT0}, 0xc0, v{vL16}
            v_lshl_add_u32 v{vH1O}, v{vT0}, 2, v{vH1O}""")
        if idx == 33:
            a(f"""v_and_b32 v{vT0}, 0x30, v{vL16}
            v_lshrrev_b32 v{vT0}, 2, v{vT0}
            v_add_u32 v{vH1O}, v{vH1O}, v{vT0}
            s_lshl_b32 s28, s{sW}, 5
            s_add_u32 s28, s28, {L_AST}
            v_mov_b32 v{vKAP}, s28""")
    a(f"s_mov_b64 exec, s[{sB0}:{sB0+1}]\nds_write_b64 v{vASW}, v[{vMK}:{vLS}]")
    for j in range(8): a(f"ds_write_b128 v{vOCW}, {vr(vACC+4*j)} offset:{64*j}")
    a("s_mov_b64 exec, -1\ns_waitcnt lgkmcnt(0)\ns_barrier")
    a.stamp()
    t = vSTG
    a(f"ds_read_b128 {vr(t)}, v{vKAP}\nds_read_b128 {vr(t+4)}, v{vKAP} offset:16")
    for w in range(4): a(f"ds_read_b64 {vr(t+8+2*w, 2)}, v{vOCR} offset:{2112*w}")
    a(f"""s_waitcnt lgkmcnt(4)
    v_max3_f32 v{vMK}, v{t}, v{t+2}, v{t+4}
    v_max_f32 v{vMK}, v{vMK}, v{t+6}""")
    for w in range(4): a(f"v_sub_f32 v{t+2*w}, v{t+2*w}, v{vMK}")
    for w in range(4): a(f"v_exp_f32 v{t+2*w}, v{t+2*w}")
    a(f"s_waitcnt lgkmcnt(0)\nv_mul_f32 v{t+8}, v{t+8}, v{t}\nv_mul_f32 v{t+9}, v{t+9}, v{t}")
    for w in range(1, 4): a(f"v_fmac_f32 v{t+8}, v{t+8+2*w}, v{t+2*w}\nv_fmac_f32 v{t+9}, v{t+9+2*w}, v{t+2*w}")
    a(f"v_cvt_pk_bf16_f32 v{t+8}, v{t+8}, v{t+9}\nv_mul_f32 v{vLS}, v{t}, v{t+1}\nv_min_u32 v{t+8}, -2, v{t+8}")
    for w in range(1, 4): a(f"v_fmac_f32 v{vLS}, v{t+2*w}, v{t+2*w+1}")
    a(f"v_min_u32 v{vMK}, -2, v{vMK}\nv_min_u32 v{vLS}, -2, v{vLS}")
    a.pub_intra([f"buffer_store_dword v{t+8}, v{vH1O}, s[16:19], s{sH1S} offen", "s_mov_b64 exec, 1",
                 f"buffer_store_dwordx2 v[{vMK}:{vLS}], v{vL16}, s[16:19], s{sSTS} offen", "s_mov_b64 exec, -1"])
    a.stamp()

    vSM = vF+2
    a(f"""v_and_b32 v{vF+1}, 0x40, v{vL16}
    v_lshlrev_b32 v{vF+1}, 1, v{vF+1}
    v_lshrrev_b32 v{vT0}, 8, v{vL16}
    v_lshl_add_u32 v{vF+1}, v{vT0}, 5, v{vF+1}
    v_and_b32 v{vT0}, 0x30, v{vL16}
    v_lshrrev_b32 v{vT0}, 1, v{vT0}
    v_add_u32 v{vF+1}, v{vF+1}, v{vT0}""")
    def o_shadow():
        colsum_read(L_CSF, vCSF, vDG, vF)
        red_waddr(a, vF); fin_addr(a, vF+8, vF+9)
        a(f"""ds_read_b64 {vr(vF+10, 2)}, v{vF+8} offset:1024
        v_and_b32 v{vF+9}, 0x100, v{vL16}
        v_and_b32 v{vT0}, 0xf0, v{vL16}
        v_lshrrev_b32 v{vT0}, 2, v{vT0}
        v_add_u32 v{vF+9}, v{vF+9}, v{vT0}""")
    def o_weights():
        a(f"v_max_f32_dpp v{vSM+2}, v{vSM}, v{vSM} row_ror:4 {DPP}")
        a.allred_rows(vSM+2, vSM+3, "v_max_f32")
        a(f"v_sub_f32 v{vSM}, v{vSM}, v{vSM+2}\nv_exp_f32 v{vSM}, v{vSM}\nv_mul_f32 v{vSM+1}, v{vSM}, v{vSM+1}")
        a(f"v_add_f32_dpp v{vSM+1}, v{vSM+1}, v{vSM+1} row_ror:4 {DPP}")
        a.allred_rows(vSM+1, vSM+3, "v_add_f32")
        a(f"v_rcp_f32 v{vSM+1}, v{vSM+1}\nv_mul_f32 v{vSM}, v{vSM}, v{vSM+1}")
    def o_per(i):
        t, mt = i >> 1, i & 1; d = vD + 4*mt
        a(f"{MF} {vr(d)}, {vr(vA+4*i)}, {vr(vWO+4*t)}, {'0' if t == 0 else vr(d)}")
    gather(a, "o", sH1L, sH1L2, o_per, o_shadow,
           pre=dict(ld=f"buffer_load_dwordx2 {vr(vSM, 2)}, v{vF+1}, s[16:19], s{sSTL} offen sc1", regs=[vSM, vSM+1], use=o_weights))
    for r in range(4): a(f"v_mul_f32_dpp v{vD+r}, v{vSM}, v{vD+r} row_newbcast:{r} {DPP}")
    for r in range(4): a(f"v_fmac_f32_dpp v{vD+r}, v{vSM}, v{vD+4+r} row_newbcast:{4+r} {DPP}")
    a.butterfly(vD)
    a(f"ds_write_b32 v{vF}, v{vD}\ns_waitcnt lgkmcnt(0)\ns_barrier")
    a.stamp()
    a(f"s_cmp_lg_u32 s{sW}, 0\ns_cbranch_scc1 L_o_skip")
    red_sum(a, vF+8, vA)
    a(f"""v_pk_add_f32 {vr(vA,2)}, {vr(vA,2)}, {vr(vF+10,2)}
    s_mov_b32 exec_hi, 0
    v_cvt_pk_bf16_f32 v{vA+2}, v{vA}, v{vA+1}
    v_min_u32 v{vA+2}, -2, v{vA+2}
    buffer_store_dword v{vA+2}, v{vF+9}, s[16:19], s{sYS} offen sc1
    ds_write_b64 v{vF+8}, {vr(vA,2)} offset:1024
    s_mov_b64 exec, -1
    s_waitcnt vmcnt(0) lgkmcnt(0)
    L_o_skip:
    s_barrier""")
    a.stamp()

    def f1_shadow():
        a(f"""v_and_b32 v{vF+8}, 0x30, v{vL16}
        v_and_b32 v{vF+9}, 0x40, v{vL16}
        v_cmp_ne_u32 vcc, 0, v{vF+9}
        v_xor_b32 v{vT0}, 0x30, v{vF+8}
        v_cndmask_b32 v{vT0}, v{vF+8}, v{vT0}, vcc
        v_add_u32 v{vT0}, v{vT0}, v{vF+9}
        v_and_b32 v{vF+9}, 0x180, v{vL16}
        v_add_u32 v{vT0}, v{vT0}, v{vF+9}
        v_lshrrev_b32 v{vT0}, 1, v{vT0}
        v_lshrrev_b32 v{vF+9}, 3, v{vF+9}
        v_lshrrev_b32 v{vF+8}, 2, v{vF+8}
        v_add_u32 v{vF+9}, v{vF+9}, v{vF+8}
        v_add_u32 v{vF+8}, {L_RED}, v{vT0}""")
        w32_traddr(vF+10, L_WD)
    ln_gemv(a, "f", sYL, sYL2, vWGU, vCSF, f1_shadow)
    a.stamp()
    a(f"s_cmp_lg_u32 s{sW}, 0\ns_cbranch_scc1 L_f_skip")
    red_sum(a, vF+8, vA)
    a(f"""v_mul_f32_dpp v{vA}, v{vA}, v{vA} row_half_mirror {DPP}
    v_mul_f32_dpp v{vA+1}, v{vA+1}, v{vA+1} row_half_mirror {DPP}
    s_mov_b64 exec, 0x0f0f0f0f
    v_cvt_pk_bf16_f32 v{vA+2}, v{vA}, v{vA+1}
    v_min_u32 v{vA+2}, -2, v{vA+2}""")
    a.pub_intra([f"buffer_store_dword v{vA+2}, v{vF+9}, s[16:19], s{sHS} offen"])
    a("s_mov_b64 exec, -1\nL_f_skip:")
    a(f"s_cmp_lg_u32 s{sW}, 1\ns_cbranch_scc1 L_wd_skip")
    for j in range(7):
        for h in range(2): a(f"ds_read_b64_tr_b16 {vr(vA+4*j+2*h, 2)}, v{vF+10} offset:{1024*j+128*h}")
    a("L_wd_skip:")
    stats_write(a)
    a("s_waitcnt lgkmcnt(0)\ns_barrier")
    a.stamp()

    vH, vE, vR = 52, 60, 76
    a(f"s_cmp_lg_u32 s{sW}, 1\ns_cbranch_scc1 L_f2_skip")
    hld = f"buffer_load_dwordx4 {vr(vH)}, v{vL16}, s[16:19], s{sHL} offen sc1\nbuffer_load_dwordx4 {vr(vH+4)}, v{vL16}, s[16:19], s{sHL} offen offset:1024 sc1"
    a(hld)
    a(f"v_and_b32 v{vMK}, 0x30, v{vL16}\nv_add_u32 v{vLS}, {L_STAT}, v{vMK}"); stats_read(a, vLS, vE)
    a(f"""v_lshrrev_b32 v{vOCW}, 8, v{vL16}
    v_lshlrev_b32 v{vOCR}, 4, v{vOCW}
    v_lshl_add_u32 v{vOCR}, v{vMK}, 2, v{vOCR}
    v_add_u32 v{vOCR}, {L_RES}, v{vOCR}
    ds_read_b128 {vr(vR)}, v{vOCR}
    v_lshl_add_u32 v{vASW}, v{vOCW}, 6, v{vMK}
    v_and_b32 v{vH1O}, 1, v{vOCW}
    v_lshl_add_u32 v{vH1O}, v{vH1O}, 3, v{vMK}
    v_lshrrev_b32 v{vOCW}, 1, v{vOCW}
    v_lshl_add_u32 v{vH1O}, v{vOCW}, 8, v{vH1O}
    s_waitcnt lgkmcnt(0)""")
    stats_var(a, vE)
    a(f"v_rcp_f32 v{vKAP}, v{vE+4}\nL_h_w:\ns_waitcnt vmcnt(0)"); a.check(range(vH, vH+8), vT0)
    a("s_cbranch_vccnz L_h_r\nL_h_g:"); a.retry_stub("L_h_r", hld, "L_h_w", "L_h_g")
    for j in range(7): a(f"{MF} {vr(vE+4*(j&3))}, {vr(vA+4*j)}, {vr(vH+4*(j>>2))}, {'0' if j < 4 else vr(vE+4*(j&3))}")
    for r in range(4): a(f"v_add_f32_dpp v{vE+r}, v{vE+4+r}, v{vE+r} row_ror:12 {DPP}")
    for r in range(4): a(f"v_add_f32_dpp v{vE+8+r}, v{vE+12+r}, v{vE+8+r} row_ror:12 {DPP}")
    for r in range(4): a(f"v_add_f32_dpp v{vE+r}, v{vE+8+r}, v{vE+r} row_ror:8 {DPP}")
    for r in range(4): a(f"v_fmac_f32 v{vR+r}, v{vE+r}, v{vKAP}")
    a(f"""s_mov_b64 exec, s[{sB0}:{sB0+1}]
    s_cmp_lg_u32 s{sLAY}, 0
    s_cbranch_scc1 L_final
    v_cvt_pk_bf16_f32 v{vE}, v{vR}, v{vR+1}
    v_cvt_pk_bf16_f32 v{vE+1}, v{vR+2}, v{vR+3}
    v_min_u32 v{vE}, -2, v{vE}
    v_min_u32 v{vE+1}, -2, v{vE+1}
    buffer_store_dwordx2 {vr(vE,2)}, v{vH1O}, s[16:19], s{sXS} offen sc1
    ds_write_b128 v{vOCR}, {vr(vR)}
    s_mov_b64 exec, -1
    s_waitcnt vmcnt(0) lgkmcnt(0)
    L_f2_skip:
    s_cmp_lg_u32 s{sLAY}, 0
    s_cbranch_scc1 L_exit
    s_barrier""")
    a.stamp()

    def q_shadow(): fin_addr(a, vF+8, vF+9); q_lane_off(vF+9, vT0); a(f"s_add_u32 s32, s{sQS}, {OFF_Q2}\ns_add_u32 s33, s{sQL}, {OFF_Q2}")
    ln_gemv(a, "q", sXL, sXL2, vWQ, vCSQ, q_shadow)
    a.stamp()
    a(f"s_cmp_lg_u32 s{sW}, 0\ns_cbranch_scc1 L_q_skip")
    red_sum(a, vF+8, vA)
    a(f"s_mov_b32 exec_hi, 0\nv_cvt_pk_bf16_f32 v{vA+2}, v{vA}, v{vA+1}\nv_min_u32 v{vA+2}, -2, v{vA+2}")
    a.pub_intra([f"buffer_store_dword v{vA+2}, v{vF+9}, s[16:19], s32 offen"])
    a("s_mov_b64 exec, -1\nL_q_skip:")
    stats_write(a)
    a("s_waitcnt lgkmcnt(0)\ns_barrier")
    qld = f"buffer_load_dwordx4 {vr(vQ)}, v{vL16}, s[16:19], s33 offen sc1"
    a(qld); kappa(72, vF)
    a("L_q_w:\ns_waitcnt vmcnt(0)"); a.check(range(vQ, vQ+4), vT0); a("s_cbranch_vccnz L_q_r\nL_q_g:")
    a.retry_stub("L_q_r", qld, "L_q_w", "L_q_g")
    a(f"s_mov_b32 s{sLAY}, 1\ns_add_u32 s16, s16, {LSTRIDE}\ns_addc_u32 s17, s17, 0\ns_branch L_att")

    a("L_final:")
    for r in range(4): a(f"v_min_u32 v{vR+r}, -2, v{vR+r}")
    a(f"""buffer_store_dwordx4 {vr(vR)}, v{vASW}, s[16:19], s{sFS} offen sc1
    s_mov_b64 exec, -1
    s_and_b32 s28, s{sR}, 7
    s_cmp_lg_u32 s28, s{sX}
    s_cbranch_scc1 L_exit""")
    a.srd(20, pOUT, 4096)
    a(f"""v_and_b32 v{vMK}, 0x30, v{vL16}
    v_lshlrev_b32 v{vMK}, 6, v{vMK}
    v_and_b32 v{vLS}, 0xc0, v{vL16}
    v_lshrrev_b32 v{vLS}, 3, v{vLS}
    v_add_u32 v{vMK}, v{vMK}, v{vLS}
    v_lshrrev_b32 v{vLS}, 8, v{vL16}
    v_lshl_add_u32 v{vMK}, v{vLS}, 1, v{vMK}
    s_lshl_b32 s28, s{sR}, 5
    s_waitcnt vmcnt(0)""")
    fld = f"buffer_load_dwordx4 {vr(vH)}, v{vL16}, s[16:19], s{sFL} offen sc1\nbuffer_load_dwordx4 {vr(vH+4)}, v{vL16}, s[16:19], s{sFL} offen offset:1024 sc1"
    a(fld + "\nL_z_w:\ns_waitcnt vmcnt(0)"); a.check(range(vH, vH+8), vT0); a("s_cbranch_vccnz L_z_r\nL_z_g:")
    a.retry_stub("L_z_r", fld, "L_z_w", "L_z_g")
    for r in range(4): a(f"v_add_f32 v{vH+r}, v{vH+r}, v{vH+4+r}")
    a.butterfly(vH)
    a(f"v_cvt_pk_bf16_f32 v{vH}, v{vH}, v{vH}\nbuffer_store_short v{vH}, v{vMK}, s[20:23], s28 offen")
    a("L_exit:")
    if o["diag"]:
        a("s_waitcnt vmcnt(0)"); a.stamp()
        a(f"""s_mov_b32 m0, 63
        v_writelane_b32 v{vST}, s{sBUD}, m0
        s_mov_b32 m0, 62
        v_writelane_b32 v{vST}, s{sSLOW}, m0
        s_lshl_b32 s28, s2, 2
        s_add_u32 s28, s28, s{sW}
        s_lshl_b32 s28, s28, 8
        s_add_u32 s28, s28, {OFF_STAMP - LSTRIDE}
        v_lshrrev_b32 v{vL16}, 2, v{vL16}
        buffer_store_dword v{vST}, v{vL16}, s[16:19], s28 offen""")
    a("L_end:\ns_endpgm")
    for t in a.tail: a(t)
    a("L_codeend:\ns_endpgm")
    lines, pads = hazard.fix(a.l)
    return wrap("\n".join(lines), lds=(L_END + 255)//256*256, header=HEADER), pads

if __name__ == "__main__":
    s, pads = gen()
    out = sys.argv[1] if len(sys.argv) > 1 else "interleave_layers__gqa_block_cached__glu_gated_bilinear__decode.s"
    open(out, "w").write(s); print("written", out, "pad states", pads, "lds", L_END)
```

```python
import sys, struct, math
from asmlib import *
import hazard

HEADER = open("interleave_layers__gqa_block_cached__glu_gated_bilinear__decode.s.ref").read().split("; Override launch")[0]

LSTRIDE = 393216
OFF_H1, OFF_ST, OFF_Y, OFF_H, OFF_X = 0, 262144, 270336, 303104, 319488
OFF_Q2, OFF_Q1 = 786432, 819200
RST = 3328
OFF_STAMP = 2 << 20
WS_REC = 4 << 20
L_WD = 131072
L_OC = L_WD + 8192
L_WS = L_OC
L_AST = L_OC + 16384
L_RED = L_AST + 128
L_RES = L_RED + 1024
L_STAT = L_RES + 256
L_CSQ = L_STAT + 128
L_CSF = L_CSQ + 256
L_DUM = L_CSF + 256
L_END = L_DUM + 1024
vST, vL16 = 0, 1
vTR = 2
vCSQ, vCSF = 10, 11
vKAP, vT0, vMK, vLS, vOCW, vOCR, vH1O, vASW = 12, 13, 14, 15, 16, 17, 18, 19
vONE = 20
vP, vACC, vSTG = 24, 32, 64
vS = 64
vQ, vBV, vMSK = 32, 36, 44
vKD, vKR, vVD, vWA, vPOLL = 48, 52, 56, 58, 60
vA, vD, vD1, vDG = 24, 56, 60, 64
vF = 68
vWQ, vWO, vWGU, vV = 80, 96, 112, 128
sW, sX, sR, sB, sLAY = 3, 4, 5, 6, 7
sKV, sLB, sSLOW, sBUD = 24, 25, 26, 27
pX, pK, pV, pWQ, pWO, pWG, pWU, pWD, pOUT, pDBG, pWS = 36, 38, 40, 42, 44, 48, 50, 52, 54, 56, 58
sH1S, sSTS, sH1L, sH1L2, sSTL, sYS, sXS, sYL, sYL2, sXL, sXL2, sHS, sHL, sQS, sQL, sFS, sFL = range(60, 77)
sSI = 77
sB0, sDIAG = 78, 80
sXCC = 82
sWS = 83
sCF, sGSZ = 88, 89

def f32(x): return "0x%08x" % struct.unpack("<I", struct.pack("<f", x))[0]
def vr(a, n=4): return f"v[{a}:{a+n-1}]" if n > 1 else f"v{a}"
def ar(a, n=4): return f"a[{a}:{a+n-1}]"
DPP = "row_mask:0xf bank_mask:0xf"
MF = "v_mfma_f32_16x16x32_bf16"

class G(Asm):
    def __init__(self, opt):
        super().__init__(); self.o = opt; self.vm = []; self.tail = []; self.n = 0; self.opt = set()
    def uid(self, p): self.n += 1; return f"L_{p}{self.n}"
    def vmem(self, text, tag): self(text); self.vm.append(tag)
    def cnt(self, tag):
        last = max(i for i, t in enumerate(self.vm) if t == tag)
        n = sum(1 for i in range(last+1, len(self.vm)) if i not in self.opt); return min(n, 62)
    def stamp(self):
        if self.o["diag"]:
            self(f"s_memrealtime s[34:35]\ns_waitcnt lgkmcnt(0)\ns_mov_b32 m0, s{sSI}\nv_writelane_b32 v{vST}, s34, m0\ns_add_u32 s{sSI}, s{sSI}, 1")
    def srd(self, base, ptr, size):
        if self.o["xnow"] and ptr in (pWQ, pWO, pWG, pWU, pWD): size = 0
        self(f"s_mov_b32 s{base}, s{ptr}\ns_and_b32 s{base+1}, s{ptr+1}, 0xffff\ns_mov_b32 s{base+2}, {size}\ns_mov_b32 s{base+3}, 0x20000")
    def spin(self, point):
        x = self.o["xspin"]
        if x and x[0] == point:
            l = self.uid("spin")
            if len(x) > 2: self(f"s_cmp_lg_u32 s2, {x[2]}\ns_cbranch_scc1 {l}x")
            self(f"{l}:\ns_memrealtime s[86:87]\ns_waitcnt lgkmcnt(0)\ns_sub_u32 s86, s86, s84\ns_cmp_lt_u32 s86, {int(x[1]*100)}\ns_cbranch_scc1 {l}\n{l}x:")
    def out_of_line(self, text): self.tail.append(text)
    def pub_intra(self, stores):
        l = self.uid("slow"); self(f"s_cmp_lg_u32 s{sSLOW}, 0\ns_cbranch_scc1 {l}")
        for s in stores: self(s)
        self(f"{l}b:")
        self.out_of_line(f"{l}:\n" + "\n".join(s + " sc1" if s.startswith("buffer_") else s for s in stores) + f"\ns_branch {l}b")
    def retry_stub(self, name, body, back, giveup):
        self.out_of_line(f"{name}:\ns_cmp_eq_u32 s{sBUD}, 0\ns_cbranch_scc1 {giveup}\ns_sub_u32 s{sBUD}, s{sBUD}, 1\n{body}\ns_branch {back}")
    def check(self, regs, tmp):
        regs = list(regs)
        if len(regs) == 2: self(f"v_max_u32 v{tmp}, v{regs[0]}, v{regs[1]}")
        else:
            self(f"v_max3_u32 v{tmp}, v{regs[0]}, v{regs[1]}, v{regs[2]}"); k = 3
            while k + 1 < len(regs): self(f"v_max3_u32 v{tmp}, v{tmp}, v{regs[k]}, v{regs[k+1]}"); k += 2
            if k < len(regs): self(f"v_max_u32 v{tmp}, v{tmp}, v{regs[k]}")
        self(f"v_cmp_eq_u32 vcc, -1, v{tmp}")
    def butterfly(self, r):
        self(f"""v_permlane32_swap_b32 v{r}, v{r+2}
        v_permlane32_swap_b32 v{r+1}, v{r+3}
        v_add_f32 v{r}, v{r}, v{r+2}
        v_add_f32 v{r+1}, v{r+1}, v{r+3}
        v_permlane16_swap_b32 v{r}, v{r+1}
        v_add_f32 v{r}, v{r}, v{r+1}""")
    def allred_rows(self, r, t, op):
        for sw in ("16", "32"): self(f"v_mov_b32 v{t}, v{r}\nv_permlane{sw}_swap_b32 v{t}, v{r}\n{op} v{r}, v{t}, v{r}")
    def lane(self, d): self(f"v_lshrrev_b32 v{d}, 4, v{vL16}")

def stats_write(a):
    a.butterfly(vD1); a.butterfly(vDG)
    a(f"""v_add_f32_dpp v{vDG}, v{vDG}, v{vDG} row_ror:4 {DPP}
    v_lshrrev_b32 v{vDG+1}, 8, v{vL16}
    v_lshlrev_b32 v{vDG+1}, 4, v{vDG+1}
    v_add_f32_dpp v{vDG}, v{vDG}, v{vDG} row_ror:8 {DPP}
    s_lshl_b32 s28, s{sW}, 2
    s_add_u32 s28, s28, {L_STAT}
    v_add_u32 v{vDG+1}, s28, v{vDG+1}
    s_mov_b64 exec, s[{sDIAG}:{sDIAG+1}]
    ds_write2_b32 v{vDG+1}, v{vD1}, v{vDG} offset0:0 offset1:16
    s_mov_b64 exec, -1""")

def stats_read(a, vaddr, t):
    a(f"ds_read_b128 {vr(t)}, v{vaddr}\nds_read_b128 {vr(t+4)}, v{vaddr} offset:64")
def stats_var(a, t):
    a(f"""v_add_f32 v{t}, v{t}, v{t+1}
    v_add_f32 v{t+2}, v{t+2}, v{t+3}
    v_add_f32 v{t+4}, v{t+4}, v{t+5}
    v_add_f32 v{t+6}, v{t+6}, v{t+7}
    v_add_f32 v{t}, v{t}, v{t+2}
    v_add_f32 v{t+4}, v{t+4}, v{t+6}
    v_mul_f32 v{t+1}, {f32(1/512)}, v{t}
    v_mul_f32 v{t+4}, {f32(1/512)}, v{t+4}
    v_fma_f32 v{t+4}, -v{t+1}, v{t+1}, v{t+4}
    v_max_f32 v{t+4}, 0, v{t+4}
    v_add_f32 v{t+4}, {f32(1e-5)}, v{t+4}""")
KC = math.log2(math.e) / math.sqrt(128.0)

def fin_addr(a, d, t):
    a(f"""v_lshrrev_b32 v{d}, 8, v{vL16}
    v_and_b32 v{d}, 1, v{d}
    v_lshlrev_b32 v{d}, 5, v{d}
    v_and_b32 v{t}, 0xc0, v{vL16}
    v_add_u32 v{d}, v{d}, v{t}
    v_and_b32 v{t}, 0x30, v{vL16}
    v_lshrrev_b32 v{t}, 1, v{t}
    v_add_u32 v{d}, v{d}, v{t}
    v_add_u32 v{d}, {L_RED}, v{d}""")
def red_waddr(a, d):
    a(f"s_lshl_b32 s28, s{sW}, 8\ns_add_u32 s28, s28, {L_RED}\nv_lshrrev_b32 v{d}, 2, v{vL16}\nv_add_u32 v{d}, s28, v{d}")
def red_sum(a, addr, t):
    a(f"""ds_read2_b64 {vr(t)}, v{addr} offset0:0 offset1:32
    ds_read2_b64 {vr(t+4)}, v{addr} offset0:64 offset1:96
    s_waitcnt lgkmcnt(1)
    v_pk_add_f32 {vr(t,2)}, {vr(t,2)}, {vr(t+2,2)}
    s_waitcnt lgkmcnt(0)
    v_pk_add_f32 {vr(t+4,2)}, {vr(t+4,2)}, {vr(t+6,2)}
    v_pk_add_f32 {vr(t,2)}, {vr(t,2)}, {vr(t+4,2)}""")

def gather(a, name, s0, s1, per_load, shadow, pre=None):
    ld = lambda i: f"buffer_load_dwordx4 {vr(vA+4*i)}, v{vL16}, s[16:19], s{s0 if i < 4 else s1} offen offset:{1024*(i%4)} sc1"
    if pre: a(pre["ld"])
    for i in range(8): a(ld(i))
    shadow()
    if pre:
        a(f"s_waitcnt vmcnt(8)"); a.check(pre["regs"], vT0); a(f"s_cbranch_vccnz L_{name}_rp\nL_{name}_gp:")
        chk = G(a.o); chk.check(pre["regs"], vT0)
        a.retry_stub(f"L_{name}_rp", pre["ld"] + "\ns_waitcnt vmcnt(0)\n" + chk.text() + f"\ns_cbranch_vccnz L_{name}_rp\n" + "\n".join(ld(i) for i in range(8)), f"L_{name}_gp", f"L_{name}_gp")
        pre["use"]()
    for i in range(8):
        a(f"L_{name}_w{i}:\ns_waitcnt vmcnt({7-i})"); a.check(range(vA+4*i, vA+4*i+4), vT0)
        a(f"s_cbranch_vccnz L_{name}_r{i}\nL_{name}_g{i}:")
        a.retry_stub(f"L_{name}_r{i}", "\n".join(ld(k) for k in range(i, 8)), f"L_{name}_w{i}", f"L_{name}_g{i}")
        per_load(i)

def ln_gemv(a, name, s0, s1, w, cs, shadow):
    def per(i):
        t, mt = i >> 1, i & 1; A = vr(vA+4*i); z = lambda d: "0" if i == 0 else vr(d)
        a(f"{MF} {vr(vD)}, {A}, {vr(w+4*t)}, {z(vD)}\n{MF} {vr(vD1)}, {A}, {vr(vONE)}, {z(vD1)}")
        a(f"{MF} {vr(vDG)}, {A}, {A}, {z(vDG)}")
        if mt:
            A0 = vr(vA+4*i-4); a(f"{MF} {vr(vDG)}, {A0}, {A}, {vr(vDG)}\n{MF} {vr(vDG)}, {A}, {A0}, {vr(vDG)}")
    def sh(): red_waddr(a, vF); shadow()
    gather(a, name, s0, s1, per, sh)
    for r in range(4): a(f"v_fma_f32 v{vD+r}, -v{vD1+r}, v{cs}, v{vD+r}")
    a.butterfly(vD)
    a(f"ds_write_b32 v{vF}, v{vD}\ns_waitcnt lgkmcnt(0)\ns_barrier")

SCHED = {-1: "+ ext touch", 0: "Wq0", 1: "Wq1 atom", 2: "Wq2", 3: "Wq3", 7: "cWq", 8: "Wo0", 9: "Wo1 poll", 10: "Wo2", 11: "Wo3", 12: "Wd0 chk pubq", 13: "Wd1",
         15: "cWo", 16: "Wg0", 17: "Wg1", 18: "Wg2", 19: "Wg3", 20: "qld", 23: "cWg"}
def gen(**kw):
    o = dict(diag=False, D=3, wpol="", kvpol=" nt", order=None, kp=13, touch=True, force_slow=False, steps=False, xnow=False, xnoinit=False, warm=None, warmpol=" nt", kqk=24, finw=0, atw=1, sched=SCHED, xspin=None, pos=(2, 17, 18)); o.update(kw)
    a = G(o); D = o["D"]; wp = o["wpol"]; kp_ = o["kvpol"]
    a(f"""
    s_cmp_ge_u32 s2, 256
    s_cbranch_scc1 L_end
    {"s_memrealtime s[84:85]" if o["xspin"] else ""}
    s_load_dwordx16 s[36:51], s[0:1], 0
    s_load_dwordx8 s[52:59], s[0:1], 64
    v_lshrrev_b32 v2, 6, v0
    v_and_b32 v3, 63, v0
    v_readfirstlane_b32 s{sW}, v2
    v_lshlrev_b32 v{vL16}, 4, v3
    v_mov_b32 v{vPOLL+2}, v0
    s_and_b32 s{sX}, s2, 7
    s_lshr_b32 s{sR}, s2, 3
    s_and_b32 s{sB}, s{sR}, 3
    s_lshl_b32 s28, s{sB}, 3
    s_add_u32 s28, s28, s{sX}
    s_lshl_b32 s{sKV}, s28, 21
    s_lshr_b32 s28, s{sR}, 2
    s_lshl_b32 s28, s28, 18
    s_add_u32 s{sKV}, s{sKV}, s28
    s_lshl_b32 s28, s{sW}, 12
    s_add_u32 s{sKV}, s{sKV}, s28
    s_lshl_b32 s{sLB}, s{sW}, 15
    s_add_u32 s{sWS}, s28, {L_WS}
    s_sub_u32 s29, s{sR}, 4
    s_cmp_lt_u32 s{sR}, 16
    s_cselect_b32 s{sCF}, s{sR}, s29
    s_add_u32 s29, s{sR}, 16
    s_lshr_b32 s28, s{sR}, 2
    s_cmp_eq_u32 s28, 3
    s_cselect_b32 s{sCF}, s29, s{sCF}
    s_cselect_b32 s{sGSZ}, 0, {1792*1024}
    v_lshrrev_b32 v2, 4, v3
    v_lshlrev_b32 v4, 4, v2
    v_xor_b32 v{vKD}, v{vL16}, v4
    v_xor_b32 v{vKD+1}, 64, v{vKD}
    v_xor_b32 v{vKD+2}, 0x80, v{vKD}
    v_xor_b32 v{vKD+3}, 0xc0, v{vKD}
    s_mov_b32 s{sSI}, 0
    s_waitcnt lgkmcnt(0)
    """)
    a.stamp(); a.spin("start")
    a.srd(8, pK, 64 << 20)
    seq = [f"K{i}" for i in range(16)] + [f"V{i}" for i in range(16)]
    N = len(seq); slot = {t: i % 8 for i, t in enumerate(seq)}
    def issue(t):
        T = int(t[1:]); a(f"s_add_u32 m0, s{sLB}, {slot[t]*4096}\ns_add_u32 s28, s{sKV}, {T*16384}")
        for j in range(4):
            va, srd = (vKD+j, "s[8:11]") if t[0] == "K" else (vVD+(j & 1), "s[12:15]")
            a.vmem(f"buffer_load_dwordx4 v{va}, {srd}, s28 offen offset:{1024*j}{kp_} lds", t)
    WSZ = {pWQ: 4 << 20, pWO: 4 << 20, pWG: 1792*1024, pWU: 1792*1024, pWD: 1792*1024}
    def wdma(tag, ptr, va, goff, ldsbase, ldsoff, pol):
        a.srd(20, ptr, WSZ[ptr])
        if tag == "Wg" and not o["xnow"]: a(f"s_mov_b32 s22, s{sGSZ}")
        if tag == "Wd" and not o["xnow"]: a(f"s_add_u32 s22, s{sX}, 1\ns_mul_i32 s22, s22, {224*1024}")
        a(f"s_add_u32 m0, {ldsbase}, {ldsoff}\ns_add_u32 s30, s28, {goff}")
        a.vmem(f"buffer_load_dwordx4 v{va}, s[20:23], s30 offen{pol} lds", tag)
    def wloc(name): return (f"s{sLB}", 4096*int(name.split("@")[1])) if "@" in name else (f"s{sWS}", 0)
    def frag(name):
        m, u = name[:2], int(name[2])
        sb, so = wloc(name)
        if m == "Wg":
            a(f"v_mul_u32_u24 v{vWA}, 224, v{vL16}")
            a(f"s_mul_i32 s28, s{sW}, {128*3584}\ns_mul_i32 s29, s{sX}, 448\ns_add_u32 s28, s28, s29\ns_lshl_b32 s29, s{sCF}, 4\ns_add_u32 s28, s28, s29")
            wdma(m, (pWG, pWU)[u >> 1], vWA, 64*(u & 1)*3584, sb, so + 1024*u, wp); return
        sh = 13 if m == "Wq" else 10
        a(f"v_lshrrev_b32 v{vWA}, 5, v{vL16}\nv_and_b32 v{vWA+1}, 16, v{vL16}\nv_lshl_add_u32 v{vWA}, v{vWA}, {sh}, v{vWA+1}")
        if m == "Wq": a(f"s_lshl_b32 s28, s{sW}, 20\ns_lshl_b32 s29, s{sX}, 10\ns_add_u32 s28, s28, s29")
        if m == "Wo": a(f"s_lshl_b32 s28, s{sW}, 17\ns_lshl_b32 s29, s{sX}, 19\ns_add_u32 s28, s28, s29")
        if m == "Wd": a(f"s_lshl_b32 s28, s{sW}, 16\ns_mul_i32 s29, s{sX}, {224*1024}\ns_add_u32 s28, s28, s29")
        a(f"s_lshl_b32 s29, s{sR}, 5\ns_add_u32 s28, s28, s29")
        if m == "Wd":
            a(f"s_lshl_b32 s29, s{sW}, 11"); wdma(m, pWD, vWA, (32*u) << sh, "s29", L_WD + 1024*u, wp)
        else: wdma(m, pWQ if m == "Wq" else pWO, vWA, (32*u) << sh, sb, so + 1024*u, wp)
    def warm(name):
        m, u = name[:2], int(name[2]); pol = o["warmpol"]
        a(f"s_lshl_b32 s31, s{sR}, 2\ns_add_u32 s31, s31, s{sW}")
        if m == "wq": a(f"s_lshl_b32 s28, s31, 13\ns_lshl_b32 s29, s{sX}, 10\ns_add_u32 s28, s28, s29"); wdma("warm", pWQ, vL16, u << 20, 0, L_DUM, pol)
        if m == "wo": a(f"s_lshl_b32 s28, s31, 12\ns_lshl_b32 s29, s{sX}, 19\ns_add_u32 s28, s28, s29"); wdma("warm", pWO, vL16, 1024*u, 0, L_DUM, pol)
        if m == "wd": a(f"s_mul_i32 s28, s31, 1792\ns_mul_i32 s29, s{sX}, {224*1024}\ns_add_u32 s28, s28, s29"); wdma("warm", pWD, vL16, 768*u, 0, L_DUM, pol)
        if m == "wg":
            a(f"v_lshrrev_b32 v{vWA}, 9, v{vL16}\nv_mul_u32_u24 v{vWA}, 3072, v{vWA}\nv_add_u32 v{vWA}, v{vWA}, v{vL16}")
            a(f"s_mul_i32 s28, s31, {4*3584}\ns_mul_i32 s29, s{sX}, 448\ns_and_b32 s29, s29, 0xffffff80\ns_add_u32 s28, s28, s29")
            wdma("warm", (pWG, pWU)[u >> 1], vWA, 7168*(u & 1), 0, L_DUM, pol)
    def touch_code():
        if not o["touch"]: return
        l = a.uid("pc")
        a(f"""s_getpc_b64 s[28:29]
        {l}:
        s_sub_u32 s28, s28, {l}-{KNAME}
        s_subb_u32 s29, s29, 0
        v_lshlrev_b32 v{vT0}, 7, v{vPOLL+2}
        v_min_u32 v{vT0}, L_codeend-{KNAME}-4, v{vT0}
        v_mov_b32 v{vLS}, s29
        v_add_co_u32 v{vMK}, vcc, s28, v{vT0}
        v_addc_co_u32 v{vLS}, vcc, 0, v{vLS}, vcc""")
        a.vmem(f"global_load_dword v{vT0}, v[{vMK}:{vLS}], off", "touch")
    def extras():
        a.srd(16, pWS, WS_REC); a.srd(12, pV, 64 << 20); a.srd(20, pX, 4096)
        a(f"s_mov_b32 s{sB0}, 0x000f000f\ns_mov_b32 s{sB0+1}, 0x000f000f\ns_mov_b32 s{sDIAG}, 0x00020001\ns_mov_b32 s{sDIAG+1}, 0x00080004")
        for i in range(16): a(f"v_mov_b32 v{vA+i}, 0")
        for i in range(4): a(f"v_mov_b32 v{vF+i}, -1")
        a(f"""v_and_b32 v{vF+4}, 0xf0, v{vL16}
        v_lshlrev_b32 v{vF+4}, 6, v{vF+4}
        v_lshrrev_b32 v{vF+5}, 8, v{vL16}
        v_lshl_add_u32 v{vF+4}, v{vF+5}, 4, v{vF+4}
        s_lshl_b32 s28, s{sW}, 8
        s_mov_b64 exec, s[{sB0}:{sB0+1}]""")
        for t in range(4): a.vmem(f"buffer_load_dwordx4 {vr(vA+4*t)}, v{vF+4}, s[20:23], s28 offen offset:{64*t}", "ext")
        a(f"""s_mov_b64 exec, -1
        v_lshlrev_b32 v{vF+5}, 10, v{vF+5}
        v_and_b32 v{vF+6}, 0xf0, v{vL16}
        v_lshrrev_b32 v{vF+6}, 3, v{vF+6}
        v_add_u32 v{vF+5}, v{vF+5}, v{vF+6}
        s_lshl_b32 s28, s{sR}, 5""")
        a.vmem(f"buffer_load_ushort v{vF+7}, v{vF+5}, s[20:23], s28 offen", "ext")
        a(f"s_cmp_lg_u32 s{sW}, {o['atw']}\ns_cbranch_scc1 L_norst\ns_mul_i32 s28, s2, {RST}")
        for i in range(3): a(f"buffer_store_dwordx4 {vr(vF)}, v{vL16}, s[16:19], s28 offen offset:{1024*i} sc1")
        a(f"s_mov_b64 exec, 0xffff\nbuffer_store_dwordx4 {vr(vF)}, v{vL16}, s[16:19], s28 offen offset:3072 sc1\ns_mov_b64 exec, -1\nL_norst:")
        a.vm.append("rst"); a.opt.add(len(a.vm)-1)
    def consts():
        a(f"""v_lshrrev_b32 v{vVD}, 8, v{vL16}
        v_lshlrev_b32 v{vVD}, 5, v{vVD}
        v_xor_b32 v{vVD}, v{vL16}, v{vVD}
        v_xor_b32 v{vVD+1}, 0x80, v{vVD}
        v_and_b32 v{vKR}, 0xf0, v{vL16}
        v_lshrrev_b32 v{vKR+1}, 8, v{vL16}
        v_lshlrev_b32 v{vKR+1}, 4, v{vKR+1}
        v_xor_b32 v{vKR+1}, v{vKR+1}, v{vKR}
        v_lshl_add_u32 v{vKR}, v{vKR}, 4, v{vKR+1}
        v_add_u32 v{vKR}, s{sLB}, v{vKR}
        v_xor_b32 v{vKR+1}, 64, v{vKR}
        v_xor_b32 v{vKR+2}, 0x80, v{vKR}
        v_xor_b32 v{vKR+3}, 0xc0, v{vKR}
        v_lshrrev_b32 v{vTR}, 6, v{vL16}
        v_and_b32 v{vTR+1}, 7, v{vTR}
        v_lshlrev_b32 v{vTR+1}, 5, v{vTR+1}
        v_lshl_add_u32 v{vTR}, v{vTR}, 8, v{vTR+1}
        v_and_b32 v{vTR+1}, 0x30, v{vL16}
        v_lshrrev_b32 v{vTR+1}, 1, v{vTR+1}
        v_add3_u32 v{vTR}, v{vTR}, v{vTR+1}, s{sLB}""")
        for j in range(1, 8): a(f"v_xor_b32 v{vTR+j}, {32*j}, v{vTR}")
        for i in range(4): a(f"v_mov_b32 v{vONE+i}, 0x3f803f80")
        a(f"""s_mov_b32 s{sLAY}, 0
        s_mov_b32 s{sBUD}, 0x40000
        s_lshl_b32 s28, s{sX}, 15
        s_lshl_b32 s29, s{sW}, 13
        s_add_u32 s{sH1L}, s28, s29
        s_add_u32 s{sH1L2}, s{sH1L}, 4096
        s_lshr_b32 s28, s{sR}, 4
        s_lshl_b32 s28, s28, 10
        s_and_b32 s30, s{sR}, 15
        s_lshl_b32 s30, s30, 4
        s_add_u32 s28, s28, s30
        s_add_u32 s{sH1S}, s{sH1L}, s28
        s_add_u32 s{sYL}, s29, {OFF_Y}
        s_add_u32 s{sYL2}, s29, {OFF_Y+4096}
        s_add_u32 s{sXL}, s29, {OFF_X}
        s_add_u32 s{sXL2}, s29, {OFF_X+4096}
        s_lshl_b32 s28, s{sX}, 10
        s_lshl_b32 s29, s{sW}, 8
        s_add_u32 s28, s28, s29
        s_add_u32 s{sSTL}, s28, {OFF_ST}
        s_lshl_b32 s28, s{sR}, 3
        s_add_u32 s{sSTS}, s{sSTL}, s28
        s_lshr_b32 s28, s{sR}, 1
        s_lshl_b32 s28, s28, 11
        s_lshr_b32 s29, s{sX}, 2
        s_lshl_b32 s29, s29, 10
        s_add_u32 s28, s28, s29
        s_and_b32 s29, s{sR}, 1
        s_lshl_b32 s31, s29, 9
        s_add_u32 s28, s28, s31
        s_and_b32 s29, s{sX}, 3
        s_lshl_b32 s29, s29, 6
        s_add_u32 s28, s28, s29
        s_add_u32 s{sYS}, s28, {OFF_Y}
        s_add_u32 s{sXS}, s28, {OFF_X}
        s_lshl_b32 s28, s{sX}, 11
        s_add_u32 s{sHL}, s28, {OFF_H}
        s_lshr_b32 s28, s{sCF}, 4
        s_lshl_b32 s28, s28, 10
        s_and_b32 s29, s{sCF}, 3
        s_lshl_b32 s29, s29, 8
        s_add_u32 s28, s28, s29
        s_lshr_b32 s29, s{sCF}, 2
        s_and_b32 s29, s29, 3
        s_lshl_b32 s29, s29, 6
        s_add_u32 s28, s28, s29
        s_add_u32 s{sHS}, s{sHL}, s28
        s_lshl_b32 s28, s{sX}, 12
        s_lshl_b32 s29, s{sB}, 10
        s_add_u32 s{sQL}, s28, s29
        s_add_u32 s28, s28, s31
        s_and_b32 s29, s{sR}, 6
        s_lshl_b32 s29, s29, 5
        s_add_u32 s28, s28, s29
        s_lshr_b32 s29, s{sR}, 3
        s_lshl_b32 s29, s29, 4
        s_add_u32 s{sQS}, s28, s29
        s_lshl_b32 s28, s{sR}, 11
        s_add_u32 s{sFL}, s28, {OFF_X}
        s_lshl_b32 s28, s{sX}, 8
        s_add_u32 s{sFS}, s{sFL}, s28
        s_getreg_b32 s{sXCC}, hwreg(HW_REG_XCC_ID, 0, 3)""")
    def w32_traddr(d, base):
        a(f"""v_lshrrev_b32 v{d}, 8, v{vL16}
        v_lshlrev_b32 v{d}, 8, v{d}
        v_and_b32 v{d+1}, 0xf0, v{vL16}
        v_lshrrev_b32 v{d+1}, 1, v{d+1}
        v_add_u32 v{d}, v{d}, v{d+1}
        v_add_u32 v{d}, {base}, v{d}""")
    def colsum(w, dst, t):
        for k in range(4): a(f"{MF} {vr(t)}, {vr(vONE)}, {vr(w+4*k)}, {'0' if k == 0 else vr(t)}")
        a(f"""s_lshl_b32 s28, s{sW}, 2
        s_add_u32 s28, s28, {dst}
        v_and_b32 v{vWA}, 0xf0, v{vL16}
        v_add_u32 v{vWA}, s28, v{vWA}
        ds_write_b32 v{vWA}, v{t}""")
    def colsum_read(dst, cs, t, ta):
        a(f"""v_and_b32 v{ta}, 0xf0, v{vL16}
        v_add_u32 v{ta}, {dst}, v{ta}
        ds_read_b128 {vr(t)}, v{ta}
        s_waitcnt lgkmcnt(0)
        v_add_f32 v{t}, v{t}, v{t+1}
        v_add_f32 v{t+2}, v{t+2}, v{t+3}
        v_add_f32 v{t}, v{t}, v{t+2}
        v_mul_f32 v{cs}, {f32(1/512)}, v{t}""")
    def q_lane_off(d, t):
        a(f"""v_and_b32 v{d}, 0xc0, v{vL16}
        v_lshlrev_b32 v{d}, 4, v{d}
        v_and_b32 v{t}, 0x100, v{vL16}
        v_add_u32 v{d}, v{d}, v{t}
        v_and_b32 v{t}, 0x30, v{vL16}
        v_lshrrev_b32 v{t}, 2, v{t}
        v_add_u32 v{d}, v{d}, v{t}""")
    def kappa(t, ta):
        a(f"s_lshl_b32 s28, s{sB}, 4\ns_add_u32 s28, s28, {L_STAT}\nv_mov_b32 v{ta}, s28"); stats_read(a, ta, t)
        a("s_waitcnt lgkmcnt(0)"); stats_var(a, t)
        a(f"v_rsq_f32 v{t+4}, v{t+4}\nv_mul_f32 v{vKAP}, {f32(KC)}, v{t+4}")
    def q1_phase():
        qD, qD1, qDG, T = 40, 60, 64, 72
        a("s_waitcnt lgkmcnt(0)")
        for t in range(4):
            A = vr(vA+4*t); z = lambda d: "0" if t == 0 else vr(d)
            a(f"{MF} {vr(qD)}, {A}, {vr(vWQ+4*t)}, {z(qD)}\n{MF} {vr(44)}, {A}, {vr(vONE)}, {z(44)}\n{MF} {vr(qDG)}, {A}, {A}, {z(qDG)}")
        a(f"v_lshlrev_b32 v{vF+7}, 16, v{vF+7}\nv_mul_f32 v{vF+7}, 0x3e000000, v{vF+7}\nv_lshrrev_b32 v{vF}, 2, v{vL16}\nv_add_u32 v{vF}, {L_RES}, v{vF}\nds_write_b32 v{vF}, v{vF+7}")
        colsum(vWQ, L_CSQ, 76)
        a(f"v_mov_b32 v{vF+1}, v{vPOLL+2}")
        for r in range(4): a(f"v_mov_b32 v{vD1+r}, v{44+r}")
        stats_write(a)
        a(f"v_mov_b32 v{vPOLL+2}, v{vF+1}")
        red_waddr(a, vF); a.butterfly(qD)
        a(f"ds_write_b32 v{vF}, v{qD}\ns_waitcnt lgkmcnt(0)\ns_barrier")
        colsum_read(L_CSQ, vCSQ, T, vF); kappa(T, vF)
        a(f"s_cmp_lg_u32 s{sW}, {o['finw']}\ns_cbranch_scc1 L_q1_skip")
        fin_addr(a, vF, vF+1); red_sum(a, vF, vA)
        a(f"""v_subrev_u32 v{vF+1}, {L_RED}, v{vF}
        v_and_b32 v{vF+2}, 0x3c, v{vF+1}
        v_lshlrev_b32 v{vF+2}, 2, v{vF+2}
        v_add_u32 v{vF+2}, {L_CSQ}, v{vF+2}
        ds_read_b128 {vr(vA+8)}, v{vF+2}
        ds_read_b128 {vr(vA+12)}, v{vF+2} offset:16
        v_lshrrev_b32 v{vF+1}, 6, v{vF+1}
        v_lshlrev_b32 v{vF+1}, 4, v{vF+1}
        v_add_u32 v{vF+1}, {L_STAT}, v{vF+1}
        ds_read_b128 {vr(vA+4)}, v{vF+1}
        s_waitcnt lgkmcnt(0)""")
        for t in (vA+4, vA+8, vA+12): a(f"v_add_f32 v{t}, v{t}, v{t+1}\nv_add_f32 v{t+2}, v{t+2}, v{t+3}\nv_add_f32 v{t}, v{t}, v{t+2}")
        a(f"""v_mul_f32 v{vA+4}, {f32(1/512)}, v{vA+4}
        v_fma_f32 v{vA}, -v{vA+4}, v{vA+8}, v{vA}
        v_fma_f32 v{vA+1}, -v{vA+4}, v{vA+12}, v{vA+1}
        v_cvt_pk_bf16_f32 v40, v{vA}, v{vA+1}
        v_min_u32 v40, -2, v40""")
        q_lane_off(41, vF+1)
        a("L_q1_skip:")
    def consume(t):
        off = slot.get(t, 0)*4096
        if t[0] == "W": wb, off = wloc(t); t = t[:2]
        if t[0] == "K":
            T = int(t[1:])
            for k in range(4): a(f"ds_read_b128 {ar(16*T+4*k)}, v{vKR+k} offset:{off}")
        elif t[0] == "V":
            T = int(t[1:])
            for j in range(8): a(f"ds_read_b64_tr_b16 {vr(vV+32*(T>>1)+4*j+2*(T&1), 2)}, v{vTR+j} offset:{off}")
        elif t in ("Wq", "Wo"):
            w = vWQ if t == "Wq" else vWO
            w32_traddr(vWA, wb)
            for k in range(4):
                for h in range(2): a(f"ds_read_b64_tr_b16 {vr(w+4*k+2*h, 2)}, v{vWA} offset:{off+1024*k+128*h}")
        elif t == "Wg":
            a(f"""v_lshrrev_b32 v{vWA}, 8, v{vL16}
            v_lshlrev_b32 v{vWA}, 7, v{vWA}
            v_and_b32 v{vWA+1}, 0xc0, v{vL16}
            v_lshrrev_b32 v{vWA+1}, 2, v{vWA+1}
            v_add_u32 v{vWA}, v{vWA}, v{vWA+1}
            v_and_b32 v{vWA+1}, 0x20, v{vL16}
            v_lshl_add_u32 v{vWA}, v{vWA+1}, 6, v{vWA}
            v_and_b32 v{vWA+1}, 0x10, v{vL16}
            v_lshrrev_b32 v{vWA+1}, 1, v{vWA+1}
            v_add3_u32 v{vWA}, v{vWA}, v{vWA+1}, {wb}""")
            for k in range(4):
                for h in range(2): a(f"ds_read_b64_tr_b16 {vr(vWGU+4*k+2*h, 2)}, v{vWA} offset:{off+512*k+64*h}")
    poll_ld = f"global_load_dwordx2 v[{vPOLL}:{vPOLL+1}], v{vPOLL+3}, s[{pDBG}:{pDBG+1}] sc1"
    poll_chk = f"v_sad_u8 v{vT0}, v{vPOLL}, 0, 0\nv_sad_u8 v{vT0}, v{vPOLL+1}, 0, v{vT0}\nv_cmp_ne_u32 vcc, 32, v{vT0}"
    k_last = seq.index("V7")
    qld = f"buffer_load_dwordx4 {vr(vQ)}, v{vL16}, s[16:19], s33 offen sc1"
    ev = {}
    for k_, names in o["sched"].items(): ev[int(k_)] = names.split()
    k_qk = o["kqk"]; state = {"next": 0}
    def event(e):
        if e[0] == "W": frag(e)
        elif e[0] == "w": warm(e)
        elif e[:2] == "cW":
            t = e[1:3]; a(f"s_waitcnt vmcnt({a.cnt(t)})"); consume(e[1:])
            if t == "Wq": a(f"s_waitcnt vmcnt({min(a.cnt('ext'), a.cnt(t))})"); q1_phase()
            if t == "Wg": a("s_waitcnt lgkmcnt(0)"); colsum(vWGU, L_CSF, 72)
        elif e == "ext": extras()
        elif e == "bar": a("s_barrier")
        elif e == "touch": touch_code()
        elif e == "atom":
            if o["xnoinit"]: return
            a(f"""s_cmp_lg_u32 s{sW}, {o['atw']}
            s_cbranch_scc1 L_noatom
            s_waitcnt vmcnt({a.cnt('rst')})
            s_lshl_b32 s28, s{sXCC}, 3
            s_lshl_b64 s[28:29], 1, s28
            v_mov_b32 v{vPOLL}, s28
            v_mov_b32 v{vPOLL+1}, s29
            s_lshl_b32 s28, s{sX}, 5
            v_mov_b32 v{vPOLL+3}, s28
            s_mov_b64 exec, 1
            global_atomic_add_x2 v{vPOLL+3}, v[{vPOLL}:{vPOLL+1}], s[{pDBG}:{pDBG+1}] sc1
            s_mov_b64 exec, -1
            L_noatom:""")
        elif e == "poll":
            a(f"v_and_b32 v{vPOLL+3}, 0x70, v{vL16}\nv_lshlrev_b32 v{vPOLL+3}, 1, v{vPOLL+3}"); a.vmem(poll_ld, "poll")
        elif e == "chk":
            a(f"s_waitcnt vmcnt({a.cnt('poll')})\nL_init_w:\n{poll_chk}\n{'s_nop 0' if o['xnoinit'] else 's_cbranch_vccnz L_init_r'}\nL_init_g:")
            a.retry_stub("L_init_r", poll_ld + "\ns_waitcnt vmcnt(0)", "L_init_w", "L_init_g")
            a(f"""v_readlane_b32 s28, v{vPOLL}, s{sX}
            v_readlane_b32 s29, v{vPOLL+1}, s{sX}
            s_lshl_b32 s30, s{sXCC}, 3
            s_lshl_b64 s[30:31], 32, s30
            s_cmp_lg_u64 s[28:29], s[30:31]
            s_cselect_b32 s{sSLOW}, {0 if o['xnoinit'] else 1}, {1 if o['force_slow'] else 0}""")
        elif e == "pubq":
            a(f"s_cmp_lg_u32 s{sW}, {o['finw']}\ns_cbranch_scc1 L_pq_skip\ns_add_u32 s28, s{sQS}, {OFF_Q1}\ns_mov_b32 exec_hi, 0")
            a.pub_intra(["buffer_store_dword v40, v41, s[16:19], s28 offen"])
            a("s_mov_b64 exec, -1\nL_pq_skip:")
        elif e == "qld":
            a(f"s_add_u32 s33, s{sQL}, {OFF_Q1}"); a.vmem(qld, "q")
        elif e[0] == "+": issue_next()
        else: raise ValueError(e)
    def issue_next():
        if state["next"] < N: issue(seq[state["next"]]); state["next"] += 1
    def step(k):
        t = seq[k]
        a(f"s_waitcnt vmcnt({a.cnt(t)}) lgkmcnt(0)")
        if o["steps"]: a.stamp()
        while state["next"] <= min(k + D, N-1): issue_next()
        if k <= k_last: consume(t)
        for e in ev.get(k, []): event(e)
        assert state["next"] <= k + 8
    for e in ev.get(-1, []): event(e)
    while state["next"] < D: issue_next()
    consts()
    for k in range(k_qk): step(k)
    a(f"s_waitcnt vmcnt({a.cnt('q')}) lgkmcnt(0)\nL_q1_w:"); a.check(range(vQ, vQ+4), vT0); a("s_cbranch_vccnz L_q1_r\nL_q1_g:")
    a.retry_stub("L_q1_r", qld + "\ns_waitcnt vmcnt(0)", "L_q1_w", "L_q1_g")

    a("L_att:"); a.stamp()
    a(f"v_and_b32 v{vT0}, 0xc0, v{vL16}")
    for cl in range(4): a(f"v_cmp_eq_u32 vcc, {64*cl}, v{vT0}\nv_cndmask_b32 v{vMSK+cl}, 0, -1, vcc")
    def bver(n):
        cl, t = n >> 2, n & 3; d = vBV + 4*(n & 1); rot = (4*(cl-t)) % 16
        return [f"v_and_b32 v{d+i}, v{vQ+i}, v{vMSK+cl}" if rot == 0 else f"v_and_b32_dpp v{d+i}, v{vQ+i}, v{vMSK+cl} row_ror:{rot} {DPP}" for i in range(4)]
    for s in bver(0): a(s)
    for n in range(16):
        cl, t = n >> 2, n & 3; nxt = bver(n+1) if n < 15 else []
        for ac in range(4):
            T = 8*(ac >> 1) + 2*cl + (ac & 1)
            a(f"{MF} {vr(vS+4*ac)}, {ar(16*T+4*t)}, {vr(vBV+4*(n&1))}, {'0' if n == 0 else vr(vS+4*ac)}")
            if nxt and ac < 2: a(nxt[2*ac]); a(nxt[2*ac+1])
    a(f"""s_lshl_b32 s28, s{sW}, 12
    s_add_u32 s28, s28, {L_OC}
    v_and_b32 v{vOCW}, 0x30, v{vL16}
    v_mul_u32_u24 v{vOCW}, 33, v{vOCW}
    v_lshrrev_b32 v{vOCR}, 8, v{vL16}
    v_lshl_add_u32 v{vOCW}, v{vOCR}, 4, v{vOCW}
    v_add_u32 v{vOCW}, s28, v{vOCW}""")
    a(f"v_max3_f32 v{vMK}, v{vS}, v{vS+1}, v{vS+2}\nv_max3_f32 v{vT0}, v{vS+3}, v{vS+4}, v{vS+5}")
    for k in range(6, 14, 4): a(f"v_max3_f32 v{vMK}, v{vMK}, v{vS+k}, v{vS+k+1}\nv_max3_f32 v{vT0}, v{vT0}, v{vS+k+2}, v{vS+k+3}")
    a(f"v_max3_f32 v{vMK}, v{vMK}, v{vS+14}, v{vS+15}\nv_max_f32 v{vMK}, v{vMK}, v{vT0}")
    a(f"v_max_f32_dpp v{vMK}, v{vMK}, v{vMK} row_ror:4 {DPP}\nv_max_f32_dpp v{vMK}, v{vMK}, v{vMK} row_ror:8 {DPP}")
    a.allred_rows(vMK, vT0, "v_max_f32")
    a(f"v_mul_f32 v{vMK}, v{vMK}, v{vKAP}")
    for k in range(16): a(f"v_fma_f32 v{vS+k}, v{vS+k}, v{vKAP}, -v{vMK}")
    for k in range(16): a(f"v_exp_f32 v{vS+k}, v{vS+k}")
    a(f"v_mov_b32 v{vLS}, 0")
    for k in range(8): a(f"v_cvt_pk_bf16_f32 v{vP+k}, v{vS+2*k}, v{vS+2*k+1}")
    a.stamp()
    a(f"s_cmp_lg_u32 s{sLAY}, 0\ns_cbranch_scc1 L_pv")
    for k in range(k_qk, k_last+1): step(k)
    a(f"v_mov_b32 v{vACC}, v{vMK}"); touch_code(); a(f"v_mov_b32 v{vMK}, v{vACC}\nv_mov_b32 v{vLS}, 0\ns_waitcnt lgkmcnt(0)")
    while state["next"] < N: issue_next()
    a(f"s_waitcnt vmcnt({a.cnt('touch') if o['touch'] else 62})")
    a("L_pv:"); a.stamp()
    order = [("R", 0, j) for j in range(8)]
    for c in range(3):
        for j in range(8): order += [("R", c+1, j), ("L", c, j)]
    order += [("L", 3, j) for j in range(8)]
    lops = [(c, j) for k, c, j in order if k == "L"]; LA = 3
    def lread(n):
        c, j = lops[n]; d = vSTG + 4*(n % 4)
        if j == 0: a(f"s_waitcnt vmcnt({a.cnt(f'V{9+2*c}')})")
        for h in range(2): a(f"ds_read_b64_tr_b16 {vr(d+2*h, 2)}, v{vTR+j} offset:{slot[f'V{8+2*c+h}']*4096}")
    fill = [f"v_dot2c_f32_bf16 v{vLS}, v{vP+k}, v{vONE}" for k in range(8)]
    nl = 0; issued = 0
    for idx, (k, c, j) in enumerate(order):
        if k == "R":
            if c > 0 and j == 0:
                for i in range(4): a(f"v_mov_b32_dpp v{vP+i}, v{vP+i} row_ror:12 {DPP}")
            a(f"{MF} {vr(vACC+4*j)}, {vr(vV+32*c+4*j)}, {vr(vP)}, {'0' if c == 0 else vr(vACC+4*j)}")
            if c == 0:
                a(fill[j])
                if j >= 8-LA: lread(issued); issued += 1
        else:
            if c > 0 and j == 0:
                for i in range(4): a(f"v_mov_b32_dpp v{vP+4+i}, v{vP+4+i} row_ror:12 {DPP}")
            a(f"s_waitcnt lgkmcnt({2*(issued-nl-1)})")
            a(f"{MF} {vr(vACC+4*j)}, {vr(vSTG+4*(nl%4))}, {vr(vP+4)}, {vr(vACC+4*j)}")
            nl += 1
            if issued < len(lops): lread(issued); issued += 1
        if idx == 9:
            a(f"v_add_f32_dpp v{vLS}, v{vLS}, v{vLS} row_ror:4 {DPP}")
        if idx == 11:
            a(f"v_add_f32_dpp v{vLS}, v{vLS}, v{vLS} row_ror:8 {DPP}")
        if idx == 13: a.allred_rows(vLS, vT0, "v_add_f32")
        if idx == 27:
            a(f"""s_mul_i32 s28, s{sW}, 528
            s_add_u32 s28, s28, {L_OC}
            v_lshrrev_b32 v{vOCR}, 1, v{vL16}
            v_add_u32 v{vOCR}, s28, v{vOCR}""")
        if idx == 29:
            a(f"""s_lshl_b32 s28, s{sW}, 3
            s_add_u32 s28, s28, {L_AST}
            v_and_b32 v{vASW}, 0x30, v{vL16}
            v_lshl_add_u32 v{vASW}, v{vASW}, 1, s28""")
        if idx == 31:
            a(f"""v_and_b32 v{vH1O}, 0x300, v{vL16}
            v_lshlrev_b32 v{vH1O}, 3, v{vH1O}
            v_and_b32 v{vT0}, 0xc0, v{vL16}
            v_lshl_add_u32 v{vH1O}, v{vT0}, 2, v{vH1O}""")
        if idx == 33:
            a(f"""v_and_b32 v{vT0}, 0x30, v{vL16}
            v_lshrrev_b32 v{vT0}, 2, v{vT0}
            v_add_u32 v{vH1O}, v{vH1O}, v{vT0}
            s_lshl_b32 s28, s{sW}, 5
            s_add_u32 s28, s28, {L_AST}
            v_mov_b32 v{vKAP}, s28""")
    a(f"s_mov_b64 exec, s[{sB0}:{sB0+1}]\nds_write_b64 v{vASW}, v[{vMK}:{vLS}]")
    for j in range(8): a(f"ds_write_b128 v{vOCW}, {vr(vACC+4*j)} offset:{64*j}")
    a("s_mov_b64 exec, -1\ns_waitcnt lgkmcnt(0)\ns_barrier")
    a.stamp(); a.spin("comb")
    t = vSTG
    a(f"ds_read_b128 {vr(t)}, v{vKAP}\nds_read_b128 {vr(t+4)}, v{vKAP} offset:16")
    for w in range(4): a(f"ds_read_b64 {vr(t+8+2*w, 2)}, v{vOCR} offset:{4096*w}")
    a(f"""s_waitcnt lgkmcnt(4)
    v_max3_f32 v{vMK}, v{t}, v{t+2}, v{t+4}
    v_max_f32 v{vMK}, v{vMK}, v{t+6}""")
    for w in range(4): a(f"v_sub_f32 v{t+2*w}, v{t+2*w}, v{vMK}")
    for w in range(4): a(f"v_exp_f32 v{t+2*w}, v{t+2*w}")
    a(f"s_waitcnt lgkmcnt(0)\nv_mul_f32 v{t+8}, v{t+8}, v{t}\nv_mul_f32 v{t+9}, v{t+9}, v{t}")
    for w in range(1, 4): a(f"v_fmac_f32 v{t+8}, v{t+8+2*w}, v{t+2*w}\nv_fmac_f32 v{t+9}, v{t+9+2*w}, v{t+2*w}")
    a(f"v_cvt_pk_bf16_f32 v{t+8}, v{t+8}, v{t+9}\nv_mul_f32 v{vLS}, v{t}, v{t+1}\nv_min_u32 v{t+8}, -2, v{t+8}")
    for w in range(1, 4): a(f"v_fmac_f32 v{vLS}, v{t+2*w}, v{t+2*w+1}")
    a(f"v_min_u32 v{vMK}, -2, v{vMK}\nv_min_u32 v{vLS}, -2, v{vLS}")
    a.pub_intra([f"buffer_store_dword v{t+8}, v{vH1O}, s[16:19], s{sH1S} offen", "s_mov_b64 exec, 1",
                 f"buffer_store_dwordx2 v[{vMK}:{vLS}], v{vL16}, s[16:19], s{sSTS} offen", "s_mov_b64 exec, -1"])
    a.stamp()

    vSM = vF+2
    a(f"""v_and_b32 v{vF+1}, 0x40, v{vL16}
    v_lshlrev_b32 v{vF+1}, 1, v{vF+1}
    v_lshrrev_b32 v{vT0}, 8, v{vL16}
    v_lshl_add_u32 v{vF+1}, v{vT0}, 5, v{vF+1}
    v_and_b32 v{vT0}, 0x30, v{vL16}
    v_lshrrev_b32 v{vT0}, 1, v{vT0}
    v_add_u32 v{vF+1}, v{vF+1}, v{vT0}""")
    def o_shadow():
        colsum_read(L_CSF, vCSF, vDG, vF)
        red_waddr(a, vF); fin_addr(a, vF+8, vF+9)
        a(f"""ds_read_b64 {vr(vF+10, 2)}, v{vF+8} offset:1024
        v_and_b32 v{vF+9}, 0x100, v{vL16}
        v_and_b32 v{vT0}, 0xf0, v{vL16}
        v_lshrrev_b32 v{vT0}, 2, v{vT0}
        v_add_u32 v{vF+9}, v{vF+9}, v{vT0}""")
    def o_weights():
        a(f"v_max_f32_dpp v{vSM+2}, v{vSM}, v{vSM} row_ror:4 {DPP}")
        a.allred_rows(vSM+2, vSM+3, "v_max_f32")
        a(f"v_sub_f32 v{vSM}, v{vSM}, v{vSM+2}\nv_exp_f32 v{vSM}, v{vSM}\nv_mul_f32 v{vSM+1}, v{vSM}, v{vSM+1}")
        a(f"v_add_f32_dpp v{vSM+1}, v{vSM+1}, v{vSM+1} row_ror:4 {DPP}")
        a.allred_rows(vSM+1, vSM+3, "v_add_f32")
        a(f"v_rcp_f32 v{vSM+1}, v{vSM+1}\nv_mul_f32 v{vSM}, v{vSM}, v{vSM+1}")
    def o_per(i):
        t, mt = i >> 1, i & 1; d = vD + 4*mt
        a(f"{MF} {vr(d)}, {vr(vA+4*i)}, {vr(vWO+4*t)}, {'0' if t == 0 else vr(d)}")
    gather(a, "o", sH1L, sH1L2, o_per, o_shadow,
           pre=dict(ld=f"buffer_load_dwordx2 {vr(vSM, 2)}, v{vF+1}, s[16:19], s{sSTL} offen sc1", regs=[vSM, vSM+1], use=o_weights))
    for r in range(4): a(f"v_mul_f32_dpp v{vD+r}, v{vSM}, v{vD+r} row_newbcast:{r} {DPP}")
    for r in range(4): a(f"v_fmac_f32_dpp v{vD+r}, v{vSM}, v{vD+4+r} row_newbcast:{4+r} {DPP}")
    a.butterfly(vD)
    a(f"ds_write_b32 v{vF}, v{vD}\ns_waitcnt lgkmcnt(0)\ns_barrier")
    a.stamp()
    a(f"s_cmp_lg_u32 s{sW}, 0\ns_cbranch_scc1 L_o_skip")
    red_sum(a, vF+8, vA)
    a(f"""v_pk_add_f32 {vr(vA,2)}, {vr(vA,2)}, {vr(vF+10,2)}
    s_mov_b32 exec_hi, 0
    v_cvt_pk_bf16_f32 v{vA+2}, v{vA}, v{vA+1}
    v_min_u32 v{vA+2}, -2, v{vA+2}
    buffer_store_dword v{vA+2}, v{vF+9}, s[16:19], s{sYS} offen sc1
    ds_write_b64 v{vF+8}, {vr(vA,2)} offset:1024
    s_mov_b64 exec, -1
    s_waitcnt vmcnt(0) lgkmcnt(0)
    L_o_skip:
    s_barrier""")
    a.stamp()

    def f1_shadow():
        a(f"""v_and_b32 v{vF+8}, 0x30, v{vL16}
        v_and_b32 v{vF+9}, 0x40, v{vL16}
        v_cmp_ne_u32 vcc, 0, v{vF+9}
        v_xor_b32 v{vT0}, 0x30, v{vF+8}
        v_cndmask_b32 v{vT0}, v{vF+8}, v{vT0}, vcc
        v_add_u32 v{vT0}, v{vT0}, v{vF+9}
        v_and_b32 v{vF+9}, 0x180, v{vL16}
        v_add_u32 v{vT0}, v{vT0}, v{vF+9}
        v_lshrrev_b32 v{vT0}, 1, v{vT0}
        v_lshrrev_b32 v{vF+9}, 3, v{vF+9}
        v_lshrrev_b32 v{vF+8}, 2, v{vF+8}
        v_add_u32 v{vF+9}, v{vF+9}, v{vF+8}
        v_add_u32 v{vF+8}, {L_RED}, v{vT0}""")
        w32_traddr(vF+10, L_WD)
    ln_gemv(a, "f", sYL, sYL2, vWGU, vCSF, f1_shadow)
    a.stamp()
    a(f"s_cmp_lg_u32 s{sW}, 0\ns_cbranch_scc1 L_f_skip")
    red_sum(a, vF+8, vA)
    a(f"""v_mul_f32_dpp v{vA}, v{vA}, v{vA} row_half_mirror {DPP}
    v_mul_f32_dpp v{vA+1}, v{vA+1}, v{vA+1} row_half_mirror {DPP}
    s_mov_b64 exec, 0x0f0f0f0f
    v_cvt_pk_bf16_f32 v{vA+2}, v{vA}, v{vA+1}
    v_min_u32 v{vA+2}, -2, v{vA+2}""")
    a.pub_intra([f"buffer_store_dword v{vA+2}, v{vF+9}, s[16:19], s{sHS} offen"])
    a("s_mov_b64 exec, -1\nL_f_skip:")
    a(f"s_cmp_lg_u32 s{sW}, 1\ns_cbranch_scc1 L_wd_skip")
    for j in range(7):
        for h in range(2): a(f"ds_read_b64_tr_b16 {vr(vA+4*j+2*h, 2)}, v{vF+10} offset:{1024*j+128*h}")
    a("L_wd_skip:")
    stats_write(a)
    a("s_waitcnt lgkmcnt(0)\ns_barrier")
    a.stamp()

    vH, vE, vR = 52, 60, 76
    a(f"s_cmp_lg_u32 s{sW}, 1\ns_cbranch_scc1 L_f2_skip")
    hld = f"buffer_load_dwordx4 {vr(vH)}, v{vL16}, s[16:19], s{sHL} offen sc1\nbuffer_load_dwordx4 {vr(vH+4)}, v{vL16}, s[16:19], s{sHL} offen offset:1024 sc1"
    a(hld)
    a(f"v_and_b32 v{vMK}, 0x30, v{vL16}\nv_add_u32 v{vLS}, {L_STAT}, v{vMK}"); stats_read(a, vLS, vE)
    a(f"""v_lshrrev_b32 v{vOCW}, 8, v{vL16}
    v_lshlrev_b32 v{vOCR}, 4, v{vOCW}
    v_lshl_add_u32 v{vOCR}, v{vMK}, 2, v{vOCR}
    v_add_u32 v{vOCR}, {L_RES}, v{vOCR}
    ds_read_b128 {vr(vR)}, v{vOCR}
    v_lshl_add_u32 v{vASW}, v{vOCW}, 6, v{vMK}
    v_and_b32 v{vH1O}, 1, v{vOCW}
    v_lshl_add_u32 v{vH1O}, v{vH1O}, 3, v{vMK}
    v_lshrrev_b32 v{vOCW}, 1, v{vOCW}
    v_lshl_add_u32 v{vH1O}, v{vOCW}, 8, v{vH1O}
    s_waitcnt lgkmcnt(0)""")
    stats_var(a, vE)
    a(f"v_rcp_f32 v{vKAP}, v{vE+4}\nL_h_w:\ns_waitcnt vmcnt(0)"); a.check(range(vH, vH+8), vT0)
    a("s_cbranch_vccnz L_h_r\nL_h_g:"); a.retry_stub("L_h_r", hld, "L_h_w", "L_h_g")
    for j in range(7): a(f"{MF} {vr(vE+4*(j&3))}, {vr(vA+4*j)}, {vr(vH+4*(j>>2))}, {'0' if j < 4 else vr(vE+4*(j&3))}")
    for r in range(4): a(f"v_add_f32_dpp v{vE+r}, v{vE+4+r}, v{vE+r} row_ror:12 {DPP}")
    for r in range(4): a(f"v_add_f32_dpp v{vE+8+r}, v{vE+12+r}, v{vE+8+r} row_ror:12 {DPP}")
    for r in range(4): a(f"v_add_f32_dpp v{vE+r}, v{vE+8+r}, v{vE+r} row_ror:8 {DPP}")
    for r in range(4): a(f"v_fmac_f32 v{vR+r}, v{vE+r}, v{vKAP}")
    a(f"""s_mov_b64 exec, s[{sB0}:{sB0+1}]
    s_cmp_lg_u32 s{sLAY}, 0
    s_cbranch_scc1 L_final
    v_cvt_pk_bf16_f32 v{vE}, v{vR}, v{vR+1}
    v_cvt_pk_bf16_f32 v{vE+1}, v{vR+2}, v{vR+3}
    v_min_u32 v{vE}, -2, v{vE}
    v_min_u32 v{vE+1}, -2, v{vE+1}
    buffer_store_dwordx2 {vr(vE,2)}, v{vH1O}, s[16:19], s{sXS} offen sc1
    ds_write_b128 v{vOCR}, {vr(vR)}
    s_mov_b64 exec, -1
    s_waitcnt vmcnt(0) lgkmcnt(0)
    L_f2_skip:
    s_cmp_lg_u32 s{sLAY}, 0
    s_cbranch_scc1 L_exit
    s_barrier""")
    a.stamp()

    def q_shadow(): fin_addr(a, vF+8, vF+9); q_lane_off(vF+9, vT0); a(f"s_add_u32 s32, s{sQS}, {OFF_Q2}\ns_add_u32 s33, s{sQL}, {OFF_Q2}")
    ln_gemv(a, "q", sXL, sXL2, vWQ, vCSQ, q_shadow)
    a.stamp()
    a(f"s_cmp_lg_u32 s{sW}, 0\ns_cbranch_scc1 L_q_skip")
    red_sum(a, vF+8, vA)
    a(f"s_mov_b32 exec_hi, 0\nv_cvt_pk_bf16_f32 v{vA+2}, v{vA}, v{vA+1}\nv_min_u32 v{vA+2}, -2, v{vA+2}")
    a.pub_intra([f"buffer_store_dword v{vA+2}, v{vF+9}, s[16:19], s32 offen"])
    a("s_mov_b64 exec, -1\nL_q_skip:")
    stats_write(a)
    a("s_waitcnt lgkmcnt(0)\ns_barrier")
    a(qld); kappa(72, vF)
    a("L_q_w:\ns_waitcnt vmcnt(0)"); a.check(range(vQ, vQ+4), vT0); a("s_cbranch_vccnz L_q_r\nL_q_g:")
    a.retry_stub("L_q_r", qld, "L_q_w", "L_q_g")
    a(f"s_mov_b32 s{sLAY}, 1\ns_add_u32 s16, s16, {LSTRIDE}\ns_addc_u32 s17, s17, 0\ns_branch L_att")

    a("L_final:")
    for r in range(4): a(f"v_min_u32 v{vR+r}, -2, v{vR+r}")
    a(f"""buffer_store_dwordx4 {vr(vR)}, v{vASW}, s[16:19], s{sFS} offen sc1
    s_mov_b64 exec, -1
    s_and_b32 s28, s{sR}, 7
    s_cmp_lg_u32 s28, s{sX}
    s_cbranch_scc1 L_exit""")
    a.srd(20, pOUT, 4096)
    a(f"""v_and_b32 v{vMK}, 0x30, v{vL16}
    v_lshlrev_b32 v{vMK}, 6, v{vMK}
    v_and_b32 v{vLS}, 0xc0, v{vL16}
    v_lshrrev_b32 v{vLS}, 3, v{vLS}
    v_add_u32 v{vMK}, v{vMK}, v{vLS}
    v_lshrrev_b32 v{vLS}, 8, v{vL16}
    v_lshl_add_u32 v{vMK}, v{vLS}, 1, v{vMK}
    s_lshl_b32 s28, s{sR}, 5
    s_waitcnt vmcnt(0)""")
    fld = f"buffer_load_dwordx4 {vr(vH)}, v{vL16}, s[16:19], s{sFL} offen sc1\nbuffer_load_dwordx4 {vr(vH+4)}, v{vL16}, s[16:19], s{sFL} offen offset:1024 sc1"
    a(fld + "\nL_z_w:\ns_waitcnt vmcnt(0)"); a.check(range(vH, vH+8), vT0); a("s_cbranch_vccnz L_z_r\nL_z_g:")
    a.retry_stub("L_z_r", fld, "L_z_w", "L_z_g")
    for r in range(4): a(f"v_add_f32 v{vH+r}, v{vH+r}, v{vH+4+r}")
    a.butterfly(vH)
    a(f"v_cvt_pk_bf16_f32 v{vH}, v{vH}, v{vH}\nbuffer_store_short v{vH}, v{vMK}, s[20:23], s28 offen")
    a("L_exit:"); a.spin("exit")
    if o["diag"]:
        a("s_waitcnt vmcnt(0)"); a.stamp()
        a(f"""s_mov_b32 m0, 63
        v_writelane_b32 v{vST}, s{sBUD}, m0
        s_mov_b32 m0, 62
        v_writelane_b32 v{vST}, s{sSLOW}, m0
        s_lshl_b32 s28, s2, 2
        s_add_u32 s28, s28, s{sW}
        s_lshl_b32 s28, s28, 8
        s_add_u32 s28, s28, {OFF_STAMP - LSTRIDE}
        v_lshrrev_b32 v{vL16}, 2, v{vL16}
        buffer_store_dword v{vST}, v{vL16}, s[16:19], s28 offen""")
    a("L_end:\ns_endpgm")
    for t in a.tail: a(t)
    a("L_codeend:\ns_endpgm")
    lines, pads = hazard.fix(a.l)
    return wrap("\n".join(lines), lds=(L_END + 255)//256*256, header=HEADER), pads

if __name__ == "__main__":
    s, pads = gen()
    out = sys.argv[1] if len(sys.argv) > 1 else "interleave_layers__gqa_block_cached__glu_gated_bilinear__decode.s"
    open(out, "w").write(s); print("written", out, "pad states", pads, "lds", L_END)
```
